```python
import torch

def _softmax(x, axis=-1):
    return torch.softmax(x, dim=axis)
def _gelu(x):
    return torch.nn.functional.gelu(x, approximate="tanh")
def _silu(x):
    return torch.nn.functional.silu(x)
def _sigmoid(x):
    return torch.sigmoid(x)
def _layernorm(x, axis=-1, eps=1e-5):
    m = x.mean(dim=axis, keepdim=True)
    v = x.var(dim=axis, keepdim=True, unbiased=False)
    return (x - m) / torch.sqrt(v + eps)
def _scatter_add(tgt, idx, src, axis=0):
    return tgt.clone().index_add_(axis, idx, src)
def _segment_sum(src, seg, n):
    out = torch.zeros((n,) + src.shape[1:], dtype=src.dtype)
    return out.index_add_(0, seg, src)
def _pad(x, pw):
    flat = tuple(v for pair in reversed(pw) for v in pair)
    return torch.nn.functional.pad(x, flat)

kernel_name = 'standalone__swiglu_ffn__sampling'

def setup_inputs():

    _w = (lambda a: (lambda t: t.to(torch.bfloat16) if t.is_floating_point() else t)(torch.as_tensor(a)))
    B, S, D, F = 16, 16, 1024, 3584
    return {
        "x": _w((lambda *s: torch.randn(*s, dtype=torch.bfloat16) * 0.05)(B, S, D)),
        "w_gate": _w((lambda *s: torch.randn(*s, dtype=torch.bfloat16) * 0.05)(D, F)),
        "w_up": _w((lambda *s: torch.randn(*s, dtype=torch.bfloat16) * 0.05)(D, F)),
        "w_down": _w((lambda *s: torch.randn(*s, dtype=torch.bfloat16) * 0.05)(F, D)),
    }

def reference(x, w_gate, w_up, w_down):
    g = _silu(x @ w_gate)
    u = x @ w_up
    return (g * u) @ w_down
```

```python
import sys

HEADER = open('standalone__swiglu_ffn__sampling.s.ref').read().split('; Override launch geometry')[0]

L = []
def e(s=''): L.append(s)

WS_H_OFF = 0
WS_P_OFF = 2*1024*1024
H_BYTES = 256*3584*2
P_BYTES = 4*256*1024*4

def gemm_kernel(name, NB, KS, S, pitchA, pitchW, mode):
    stage_bytes = 8192*(1+NB)
    LPS = 2*(1+NB)
    e(f'.globl {name}')
    e('.p2align 8')
    e(f'.type {name},@function')
    e(f'{name}:')
    nwg = 224 if mode == 1 else 256
    e(f'    s_cmp_ge_u32 s2, {nwg}')
    e(f'    s_cbranch_scc1 {name}_done')
    e('    s_load_dwordx4 s[28:31], s[0:1], 0     ; x, w_gate')
    e('    s_load_dwordx4 s[32:35], s[0:1], 16')
    e('    s_load_dwordx4 s[36:39], s[0:1], 32')
    e('    s_load_dwordx2 s[40:41], s[0:1], 48    ; ws')
    e('    v_and_b32 v1, 63, v0                   ; lane')
    e('    v_lshrrev_b32 v2, 6, v0                ; wave')
    e('    s_nop 0')
    e('    v_readfirstlane_b32 s42, v2')
    e('    s_and_b32 s43, s2, 7                   ; xcd-group')
    e('    s_lshr_b32 s44, s2, 3                  ; j')
    e('    s_and_b32 s45, s44, 3                  ; mblk')
    e('    s_lshr_b32 s46, s44, 2                 ; j>>2')
    if mode == 1:
        e('    s_lshl_b32 s46, s46, 3')
        e('    s_add_u32 s46, s46, s43')
    else:
        e('    s_and_b32 s47, s43, 1')
        e('    s_lshl_b32 s47, s47, 3')
        e('    s_add_u32 s46, s46, s47')
        e('    s_lshr_b32 s47, s43, 1                 ; split')
    e('    s_waitcnt lgkmcnt(0)')
    if mode == 1:
        e('    s_mov_b32 s8, s28'); e('    s_and_b32 s9, s29, 0xffff'); e(f'    s_mov_b32 s10, {256*1024*2}'); e('    s_mov_b32 s11, 0x20000')
        e('    s_mov_b32 s12, s30'); e('    s_and_b32 s13, s31, 0xffff'); e(f'    s_mov_b32 s14, {1024*3584*2}'); e('    s_mov_b32 s15, 0x20000')
        e('    s_mov_b32 s16, s32'); e('    s_and_b32 s17, s33, 0xffff'); e(f'    s_mov_b32 s18, {1024*3584*2}'); e('    s_mov_b32 s19, 0x20000')
        e(f'    s_add_u32 s20, s40, {WS_H_OFF}'); e('    s_addc_u32 s21, s41, 0'); e('    s_and_b32 s21, s21, 0xffff'); e(f'    s_mov_b32 s22, {H_BYTES}'); e('    s_mov_b32 s23, 0x20000')
    else:
        e(f'    s_add_u32 s8, s40, {WS_H_OFF}'); e('    s_addc_u32 s9, s41, 0'); e('    s_and_b32 s9, s9, 0xffff'); e(f'    s_mov_b32 s10, {H_BYTES}'); e('    s_mov_b32 s11, 0x20000')
        e('    s_mov_b32 s12, s34'); e('    s_and_b32 s13, s35, 0xffff'); e(f'    s_mov_b32 s14, {1024*3584*2}'); e('    s_mov_b32 s15, 0x20000')
        e(f'    s_add_u32 s20, s40, {WS_P_OFF}'); e('    s_addc_u32 s21, s41, 0'); e('    s_and_b32 s21, s21, 0xffff'); e(f'    s_mov_b32 s22, {P_BYTES}'); e('    s_mov_b32 s23, 0x20000')
    e('    v_lshrrev_b32 v3, 3, v1                ; l>>3')
    e('    v_lshl_add_u32 v3, v2, 4, v3           ; r0 = 16w + (l>>3)')
    e('    v_and_b32 v4, 7, v1                    ; pos')
    e('    v_lshrrev_b32 v5, 4, v1                ; l>>4')
    e('    v_xor_b32 v6, v4, v5                   ; c (h=0)')
    e('    v_xor_b32 v7, 4, v6                    ; c (h=1)')
    e('    s_lshl_b32 s48, s45, 6                 ; m0')
    e('    v_add_u32 v8, s48, v3')
    e(f'    s_mov_b32 s49, {pitchA}')
    e('    v_mul_lo_u32 v8, v8, s49')
    e(f'    v_add_u32 v9, {8*pitchA}, v8')
    e('    v_lshl_add_u32 v8, v6, 4, v8           ; A voff h=0')
    e('    v_lshl_add_u32 v9, v7, 4, v9           ; A voff h=1')
    e('    v_lshrrev_b32 v10, 1, v4')
    e('    v_and_b32 v11, 2, v3')
    e('    v_xor_b32 v10, v10, v11                ; nb')
    e('    v_lshlrev_b32 v10, 5, v10')
    e('    v_and_b32 v11, 1, v4')
    e('    v_lshl_add_u32 v10, v11, 4, v10')
    e(f'    s_mov_b32 s49, {pitchW}')
    e('    v_mul_lo_u32 v11, v3, s49')
    e('    v_add_u32 v10, v10, v11')
    e('    s_lshl_b32 s48, s46, 7                 ; nblk*128')
    e('    v_add_u32 v10, s48, v10                ; W voff h=0')
    e(f'    v_add_u32 v11, {8*pitchW}, v10         ; W voff h=1')
    if mode == 1:
        e('    s_mov_b32 s24, 0'); e('    s_mov_b32 s25, 0')
    else:
        e(f'    s_mul_i32 s24, s47, {896*2}')
        e(f'    s_mul_i32 s25, s47, {896*pitchW}')
    e('    s_lshl_b32 s26, s42, 11')
    e('    v_lshrrev_b32 v3, 1, v2                ; wm')
    e('    v_and_b32 v4, 31, v1')
    e('    v_lshl_add_u32 v3, v3, 5, v4')
    e('    v_lshrrev_b32 v4, 1, v3')
    e('    v_and_b32 v4, 7, v4')
    e('    v_lshrrev_b32 v5, 5, v1                ; hi')
    e('    v_xor_b32 v4, v4, v5                   ; hi^s')
    e('    v_lshlrev_b32 v5, 7, v3                ; m*128')
    for kk in range(4):
        e(f'    v_xor_b32 v6, {2*kk}, v4')
        e(f'    v_lshl_add_u32 v{12+kk}, v6, 4, v5')
    e('    v_lshrrev_b32 v3, 4, v1                ; g')
    e('    v_lshrrev_b32 v4, 2, v1')
    e('    v_and_b32 v4, 3, v4                    ; r')
    e('    v_and_b32 v5, 3, v1                    ; c')
    e('    v_and_b32 v6, 1, v2                    ; wn')
    e('    v_and_b32 v7, 1, v3')
    e('    v_lshl_add_u32 v6, v6, 1, v7           ; nb')
    e('    v_and_b32 v7, 2, v4')
    e('    v_xor_b32 v6, v6, v7')
    e('    v_lshrrev_b32 v3, 1, v3')
    e('    v_lshl_add_u32 v3, v3, 3, v4           ; krow')
    e('    v_lshlrev_b32 v3, 7, v3')
    e('    v_lshl_add_u32 v3, v6, 5, v3')
    e('    v_lshl_add_u32 v16, v5, 3, v3')
    e('    v_add_u32 v16, 8192, v16')
    ACC = 72
    for i in range(16*NB):
        e(f'    v_mov_b32 v{ACC+i}, 0')
    def issue(stage):
        buf = (stage % S)*stage_bytes
        for h in range(2):
            e(f'    s_add_u32 m0, s26, {buf + h*1024}')
            e('    s_nop 0')
            e(f'    buffer_load_dwordx4 v{8+h}, s[8:11], s24 offen lds')
        for b in range(NB):
            for h in range(2):
                e(f'    s_add_u32 m0, s26, {buf + 8192*(1+b) + h*1024}')
                e('    s_nop 0')
                e(f'    buffer_load_dwordx4 v{10+h}, s[{12+4*b}:{15+4*b}], s25 offen lds')
        e('    s_add_u32 s24, s24, 128')
        e(f'    s_add_u32 s25, s25, {64*pitchW}')
    for st in range(S-1):
        issue(st)
    FR = 20
    per = 4+4*NB
    cur_buf = 0
    for k in range(KS):
        issued = min(KS, k+S-1)
        e(f'    ; ---- k-step {k}')
        e(f'    s_waitcnt vmcnt({(issued-(k+1))*LPS})')
        e('    s_barrier')
        if k+S-1 < KS:
            issue(k+S-1)
        nb = (k % S)*stage_bytes
        if nb != cur_buf:
            d = nb-cur_buf
            for r in (12,13,14,15,16):
                if d > 0: e(f'    v_add_u32 v{r}, {d}, v{r}')
                else: e(f'    v_subrev_u32 v{r}, {-d}, v{r}')
            cur_buf = nb
        def reads(kk):
            b0 = FR+per*kk
            e(f'    ds_read_b128 v[{b0}:{b0+3}], v{12+kk}')
            for b in range(NB):
                for t in range(2):
                    e(f'    ds_read_b64_tr_b16 v[{b0+4+4*b+2*t}:{b0+5+4*b+2*t}], v16 offset:{8192*b + kk*2048 + t*512}')
        def mfmas(kk):
            b0 = FR+per*kk
            for b in range(NB):
                e(f'    v_mfma_f32_32x32x16_bf16 v[{ACC+16*b}:{ACC+16*b+15}], v[{b0+4+4*b}:{b0+7+4*b}], v[{b0}:{b0+3}], v[{ACC+16*b}:{ACC+16*b+15}]')
        npr = 1+2*NB
        reads(0); reads(1)
        e(f'    s_waitcnt lgkmcnt({npr})'); mfmas(0)
        reads(2)
        e(f'    s_waitcnt lgkmcnt({npr})'); mfmas(1)
        reads(3)
        e(f'    s_waitcnt lgkmcnt({npr})'); mfmas(2)
        e('    s_waitcnt lgkmcnt(0)'); mfmas(3)
    e('    s_nop 15')
    e('    s_nop 7')
    e('    v_lshrrev_b32 v3, 1, v2')
    e('    v_and_b32 v4, 31, v1')
    e('    v_lshl_add_u32 v3, v3, 5, v4')
    e('    s_lshl_b32 s48, s45, 6')
    e('    v_add_u32 v3, s48, v3                  ; m')
    e('    v_and_b32 v4, 1, v2')
    e('    v_lshlrev_b32 v4, 5, v4')
    e('    v_lshrrev_b32 v5, 5, v1')
    e('    v_lshl_add_u32 v4, v5, 2, v4')
    e('    s_lshl_b32 s48, s46, 6')
    e('    v_add_u32 v4, s48, v4                  ; n base')
    if mode == 1:
        e('    s_mov_b32 s49, 7168')
        e('    v_mul_lo_u32 v3, v3, s49')
        e('    v_lshl_add_u32 v3, v4, 1, v3')
        e('    s_mov_b32 s49, 0xffff0000')
        e('    s_mov_b32 s50, 0xbfb8aa3b              ; -log2(e)')
        for q in range(4):
            for p in range(2):
                r = 4*q+2*p
                G0, G1, U0, U1 = ACC+r, ACC+r+1, ACC+16+r, ACC+17+r
                e(f'    v_cvt_pk_bf16_f32 v20, v{G0}, v{G1}')
                e(f'    v_cvt_pk_bf16_f32 v21, v{U0}, v{U1}')
                e('    v_lshlrev_b32 v22, 16, v20             ; g0')
                e('    v_and_b32 v23, s49, v20                ; g1')
                e('    v_lshlrev_b32 v24, 16, v21             ; u0')
                e('    v_and_b32 v25, s49, v21                ; u1')
                e('    v_mul_f32 v26, s50, v22')
                e('    v_mul_f32 v27, s50, v23')
                e('    v_exp_f32 v26, v26')
                e('    v_exp_f32 v27, v27')
                e('    s_nop 0')
                e('    v_add_f32 v26, 1.0, v26')
                e('    v_add_f32 v27, 1.0, v27')
                e('    v_rcp_f32 v26, v26')
                e('    v_rcp_f32 v27, v27')
                e('    s_nop 0')
                e('    v_mul_f32 v26, v22, v26')
                e('    v_mul_f32 v27, v23, v27')
                e('    v_cvt_pk_bf16_f32 v28, v26, v27')
                e('    v_lshlrev_b32 v26, 16, v28')
                e('    v_and_b32 v27, s49, v28')
                e('    v_mul_f32 v26, v26, v24')
                e('    v_mul_f32 v27, v27, v25')
                e(f'    v_cvt_pk_bf16_f32 v{30+2*(q&1)+p}, v26, v27')
            e(f'    buffer_store_dwordx2 v[{30+2*(q&1)}:{31+2*(q&1)}], v3, s[20:23], 0 offen offset:{16*q}')
    else:
        e('    v_lshlrev_b32 v3, 12, v3               ; m*4096')
        e('    v_lshl_add_u32 v3, v4, 2, v3')
        e(f'    s_mul_i32 s48, s47, {256*1024*4}')
        e('    v_add_u32 v3, s48, v3')
        for q in range(4):
            e(f'    buffer_store_dwordx4 v[{ACC+4*q}:{ACC+4*q+3}], v3, s[20:23], 0 offen offset:{32*q}')
    e('    s_waitcnt vmcnt(0)')
    e(f'{name}_done:')
    e('    s_endpgm')

def reduce_kernel(name):
    e(f'.globl {name}')
    e('.p2align 8')
    e(f'.type {name},@function')
    e(f'{name}:')
    e('    s_cmp_ge_u32 s2, 256')
    e(f'    s_cbranch_scc1 {name}_done')
    e('    s_load_dwordx2 s[36:37], s[0:1], 32    ; out')
    e('    s_load_dwordx2 s[40:41], s[0:1], 48    ; ws')
    e('    s_lshl_b32 s3, s2, 8')
    e('    v_add_u32 v1, s3, v0')
    e('    v_lshlrev_b32 v2, 4, v1')
    e('    v_lshlrev_b32 v3, 3, v1')
    e('    s_waitcnt lgkmcnt(0)')
    e(f'    s_add_u32 s8, s40, {WS_P_OFF}'); e('    s_addc_u32 s9, s41, 0'); e('    s_and_b32 s9, s9, 0xffff'); e(f'    s_mov_b32 s10, {P_BYTES}'); e('    s_mov_b32 s11, 0x20000')
    e('    s_mov_b32 s12, s36'); e('    s_and_b32 s13, s37, 0xffff'); e(f'    s_mov_b32 s14, {256*1024*2}'); e('    s_mov_b32 s15, 0x20000')
    for s in range(4):
        e(f'    s_mov_b32 s16, {s*256*1024*4}')
        e(f'    buffer_load_dwordx4 v[{4+4*s}:{7+4*s}], v2, s[8:11], s16 offen')
    e('    s_waitcnt vmcnt(2)')
    for i in range(4): e(f'    v_add_f32 v{4+i}, v{4+i}, v{8+i}')
    e('    s_waitcnt vmcnt(1)')
    for i in range(4): e(f'    v_add_f32 v{4+i}, v{4+i}, v{12+i}')
    e('    s_waitcnt vmcnt(0)')
    for i in range(4): e(f'    v_add_f32 v{4+i}, v{4+i}, v{16+i}')
    e('    v_cvt_pk_bf16_f32 v20, v4, v5')
    e('    v_cvt_pk_bf16_f32 v21, v6, v7')
    e('    buffer_store_dwordx2 v[20:21], v3, s[12:15], 0 offen')
    e('    s_waitcnt vmcnt(0)')
    e(f'{name}_done:')
    e('    s_endpgm')

def kd(name, vgpr):
    e(f'.amdhsa_kernel {name}')
    e(f'  .amdhsa_next_free_vgpr {vgpr}')
    e('  .amdhsa_next_free_sgpr 64')
    e(f'  .amdhsa_accum_offset {(vgpr+3)//4*4}')
    e('  .amdhsa_group_segment_fixed_size 0')
    e('  .amdhsa_kernarg_size 56')
    e('  .amdhsa_user_sgpr_count 2')
    e('  .amdhsa_user_sgpr_kernarg_segment_ptr 1')
    e('  .amdhsa_system_sgpr_workgroup_id_x 1')
    e('.end_amdhsa_kernel')

K1 = 'standalone__swiglu_ffn__sampling_kernel'
K2 = 'ffn_down_kernel'
K3 = 'ffn_reduce_kernel'
S1, S2 = 6, 9
e(HEADER.rstrip('\n'))
e(f'; @launch kernel={K1} grid=(224,1,1) block=(256,1,1) lds={S1*24576}')
e(f'; @launch kernel={K2} grid=(256,1,1) block=(256,1,1) lds={S2*16384}')
e(f'; @launch kernel={K3} grid=(256,1,1) block=(256,1,1) lds=0')
e('.amdgcn_target "amdgcn-amd-amdhsa--gfx950"')
e('.text')
gemm_kernel(K1, 2, 16, S1, 2048, 7168, 1)
gemm_kernel(K2, 1, 14, S2, 7168, 2048, 2)
reduce_kernel(K3)
e('.section .rodata,"a"')
e('.p2align 6')
kd(K1, 104); e(".p2align 6"); kd(K2, 104); e('.p2align 6'); kd(K3, 24)
open(sys.argv[1] if len(sys.argv) > 1 else 'standalone__swiglu_ffn__sampling.s', 'w').write('\n'.join(L)+'\n')
```

```python
import sys

HEADER = open('standalone__swiglu_ffn__sampling.s.ref').read().split('; Override launch geometry')[0]

L = []
def e(s=''): L.append(s)

WS_H_OFF = 0
WS_P_OFF = 2*1024*1024
H_BYTES = 256*3584*2
P_BYTES = 4*256*1024*4

def gemm_kernel(name, NB, KS, S, pitchA, pitchW, mode):
    stage_bytes = 8192*(1+NB)
    LPS = 2*(1+NB)
    e(f'.globl {name}')
    e('.p2align 8')
    e(f'.type {name},@function')
    e(f'{name}:')
    nwg = 256
    e(f'    s_cmp_ge_u32 s2, {nwg}')
    e(f'    s_cbranch_scc1 {name}_done')
    e('    s_load_dwordx4 s[28:31], s[0:1], 0     ; x, w_gate')
    e('    s_load_dwordx4 s[32:35], s[0:1], 16')
    e('    s_load_dwordx4 s[36:39], s[0:1], 32')
    e('    s_load_dwordx2 s[40:41], s[0:1], 48    ; ws')
    e('    v_and_b32 v1, 63, v0                   ; lane')
    e('    v_lshrrev_b32 v2, 6, v0                ; wave')
    e('    s_nop 0')
    e('    v_readfirstlane_b32 s42, v2')
    e('    s_and_b32 s43, s2, 7                   ; xcd-group')
    e('    s_lshr_b32 s44, s2, 3                  ; j')
    e('    s_and_b32 s45, s44, 3                  ; mblk')
    e('    s_lshr_b32 s46, s44, 2                 ; j>>2')
    if mode == 1:
        e('    s_lshl_b32 s46, s46, 3')
        e('    s_add_u32 s46, s46, s43')
    else:
        e('    s_and_b32 s47, s43, 1')
        e('    s_lshl_b32 s47, s47, 3')
        e('    s_add_u32 s46, s46, s47')
        e('    s_lshr_b32 s47, s43, 1                 ; split')
    e('    s_waitcnt lgkmcnt(0)')
    if mode == 1:
        e('    s_mov_b32 s8, s28'); e('    s_and_b32 s9, s29, 0xffff'); e(f'    s_mov_b32 s10, {256*1024*2}'); e('    s_mov_b32 s11, 0x20000')
        e('    s_mov_b32 s12, s30'); e('    s_and_b32 s13, s31, 0xffff'); e(f'    s_mov_b32 s14, {1024*3584*2}'); e('    s_mov_b32 s15, 0x20000')
        e('    s_mov_b32 s16, s32'); e('    s_and_b32 s17, s33, 0xffff'); e(f'    s_mov_b32 s18, {1024*3584*2}'); e('    s_mov_b32 s19, 0x20000')
        e(f'    s_add_u32 s20, s40, {WS_H_OFF}'); e('    s_addc_u32 s21, s41, 0'); e('    s_and_b32 s21, s21, 0xffff'); e(f'    s_mov_b32 s22, {H_BYTES}'); e('    s_mov_b32 s23, 0x20000')
    else:
        e(f'    s_add_u32 s8, s40, {WS_H_OFF}'); e('    s_addc_u32 s9, s41, 0'); e('    s_and_b32 s9, s9, 0xffff'); e(f'    s_mov_b32 s10, {H_BYTES}'); e('    s_mov_b32 s11, 0x20000')
        e('    s_mov_b32 s12, s34'); e('    s_and_b32 s13, s35, 0xffff'); e(f'    s_mov_b32 s14, {1024*3584*2}'); e('    s_mov_b32 s15, 0x20000')
        e(f'    s_add_u32 s20, s40, {WS_P_OFF}'); e('    s_addc_u32 s21, s41, 0'); e('    s_and_b32 s21, s21, 0xffff'); e(f'    s_mov_b32 s22, {P_BYTES}'); e('    s_mov_b32 s23, 0x20000')
    if mode == 1:
        e('    s_cmp_ge_u32 s2, 224')
        e(f'    s_cbranch_scc1 {name}_pfdown')
    e('    s_cmp_eq_u32 s42, 4')
    e(f'    s_cbranch_scc1 {name}_pf')
    e('    v_lshrrev_b32 v3, 3, v1                ; l>>3')
    e('    v_lshl_add_u32 v3, v2, 4, v3           ; r0 = 16w + (l>>3)')
    e('    v_and_b32 v4, 7, v1                    ; pos')
    e('    v_lshrrev_b32 v5, 4, v1                ; l>>4')
    e('    v_xor_b32 v6, v4, v5                   ; c (h=0)')
    e('    v_xor_b32 v7, 4, v6                    ; c (h=1)')
    e('    s_lshl_b32 s48, s45, 6                 ; m0')
    e('    v_add_u32 v8, s48, v3')
    e(f'    s_mov_b32 s49, {pitchA}')
    e('    v_mul_lo_u32 v8, v8, s49')
    e(f'    v_add_u32 v9, {8*pitchA}, v8')
    e('    v_lshl_add_u32 v8, v6, 4, v8           ; A voff h=0')
    e('    v_lshl_add_u32 v9, v7, 4, v9           ; A voff h=1')
    e('    v_lshrrev_b32 v10, 1, v4')
    e('    v_and_b32 v11, 2, v3')
    e('    v_xor_b32 v10, v10, v11                ; nb')
    e('    v_lshlrev_b32 v10, 5, v10')
    e('    v_and_b32 v11, 1, v4')
    e('    v_lshl_add_u32 v10, v11, 4, v10')
    e(f'    s_mov_b32 s49, {pitchW}')
    e('    v_mul_lo_u32 v11, v3, s49')
    e('    v_add_u32 v10, v10, v11')
    e('    s_lshl_b32 s48, s46, 7                 ; nblk*128')
    e('    v_add_u32 v10, s48, v10                ; W voff h=0')
    e(f'    v_add_u32 v11, {8*pitchW}, v10         ; W voff h=1')
    if mode == 1:
        e('    s_mov_b32 s24, 0'); e('    s_mov_b32 s25, 0')
    else:
        e(f'    s_mul_i32 s24, s47, {896*2}')
        e(f'    s_mul_i32 s25, s47, {896*pitchW}')
    e('    s_lshl_b32 s26, s42, 11')
    e('    v_lshrrev_b32 v3, 1, v2                ; wm')
    e('    v_and_b32 v4, 31, v1')
    e('    v_lshl_add_u32 v3, v3, 5, v4')
    e('    v_lshrrev_b32 v4, 1, v3')
    e('    v_and_b32 v4, 7, v4')
    e('    v_lshrrev_b32 v5, 5, v1                ; hi')
    e('    v_xor_b32 v4, v4, v5                   ; hi^s')
    e('    v_lshlrev_b32 v5, 7, v3                ; m*128')
    for kk in range(4):
        e(f'    v_xor_b32 v6, {2*kk}, v4')
        e(f'    v_lshl_add_u32 v{12+kk}, v6, 4, v5')
    e('    v_lshrrev_b32 v3, 4, v1                ; g')
    e('    v_lshrrev_b32 v4, 2, v1')
    e('    v_and_b32 v4, 3, v4                    ; r')
    e('    v_and_b32 v5, 3, v1                    ; c')
    e('    v_and_b32 v6, 1, v2                    ; wn')
    e('    v_and_b32 v7, 1, v3')
    e('    v_lshl_add_u32 v6, v6, 1, v7           ; nb')
    e('    v_and_b32 v7, 2, v4')
    e('    v_xor_b32 v6, v6, v7')
    e('    v_lshrrev_b32 v3, 1, v3')
    e('    v_lshl_add_u32 v3, v3, 3, v4           ; krow')
    e('    v_lshlrev_b32 v3, 7, v3')
    e('    v_lshl_add_u32 v3, v6, 5, v3')
    e('    v_lshl_add_u32 v16, v5, 3, v3')
    e('    v_add_u32 v16, 8192, v16')
    ACC = 72
    for i in range(16*NB):
        e(f'    v_mov_b32 v{ACC+i}, 0')
    def issue(stage):
        buf = (stage % S)*stage_bytes
        for h in range(2):
            e(f'    s_add_u32 m0, s26, {buf + h*1024}')
            e('    s_nop 0')
            e(f'    buffer_load_dwordx4 v{8+h}, s[8:11], s24 offen lds')
        for b in range(NB):
            for h in range(2):
                e(f'    s_add_u32 m0, s26, {buf + 8192*(1+b) + h*1024}')
                e('    s_nop 0')
                e(f'    buffer_load_dwordx4 v{10+h}, s[{12+4*b}:{15+4*b}], s25 offen lds')
        e('    s_add_u32 s24, s24, 128')
        e(f'    s_add_u32 s25, s25, {64*pitchW}')
    for st in range(S-1):
        issue(st)
    FR = 20
    per = 4+4*NB
    cur_buf = 0
    for k in range(KS):
        issued = min(KS, k+S-1)
        e(f'    ; ---- k-step {k}')
        e(f'    s_waitcnt vmcnt({(issued-(k+1))*LPS})')
        e('    s_barrier')
        if k+S-1 < KS:
            issue(k+S-1)
        nb = (k % S)*stage_bytes
        if nb != cur_buf:
            d = nb-cur_buf
            for r in (12,13,14,15,16):
                if d > 0: e(f'    v_add_u32 v{r}, {d}, v{r}')
                else: e(f'    v_subrev_u32 v{r}, {-d}, v{r}')
            cur_buf = nb
        def reads(kk):
            b0 = FR+per*kk
            e(f'    ds_read_b128 v[{b0}:{b0+3}], v{12+kk}')
            for b in range(NB):
                for t in range(2):
                    e(f'    ds_read_b64_tr_b16 v[{b0+4+4*b+2*t}:{b0+5+4*b+2*t}], v16 offset:{8192*b + kk*2048 + t*512}')
        def mfmas(kk):
            b0 = FR+per*kk
            for b in range(NB):
                e(f'    v_mfma_f32_32x32x16_bf16 v[{ACC+16*b}:{ACC+16*b+15}], v[{b0+4+4*b}:{b0+7+4*b}], v[{b0}:{b0+3}], v[{ACC+16*b}:{ACC+16*b+15}]')
        npr = 1+2*NB
        reads(0); reads(1)
        e(f'    s_waitcnt lgkmcnt({npr})'); mfmas(0)
        reads(2)
        e(f'    s_waitcnt lgkmcnt({npr})'); mfmas(1)
        reads(3)
        e(f'    s_waitcnt lgkmcnt({npr})'); mfmas(2)
        e('    s_waitcnt lgkmcnt(0)'); mfmas(3)
    e('    s_nop 15')
    e('    s_nop 7')
    e('    v_lshrrev_b32 v3, 1, v2')
    e('    v_and_b32 v4, 31, v1')
    e('    v_lshl_add_u32 v3, v3, 5, v4')
    e('    s_lshl_b32 s48, s45, 6')
    e('    v_add_u32 v3, s48, v3                  ; m')
    e('    v_and_b32 v4, 1, v2')
    e('    v_lshlrev_b32 v4, 5, v4')
    e('    v_lshrrev_b32 v5, 5, v1')
    e('    v_lshl_add_u32 v4, v5, 2, v4')
    e('    s_lshl_b32 s48, s46, 6')
    e('    v_add_u32 v4, s48, v4                  ; n base')
    if mode == 1:
        e('    s_mov_b32 s49, 7168')
        e('    v_mul_lo_u32 v3, v3, s49')
        e('    v_lshl_add_u32 v3, v4, 1, v3')
        e('    s_mov_b32 s49, 0xffff0000')
        e('    s_mov_b32 s50, 0xbfb8aa3b              ; -log2(e)')
        for q in range(4):
            for p in range(2):
                r = 4*q+2*p
                G0, G1, U0, U1 = ACC+r, ACC+r+1, ACC+16+r, ACC+17+r
                e(f'    v_cvt_pk_bf16_f32 v20, v{G0}, v{G1}')
                e(f'    v_cvt_pk_bf16_f32 v21, v{U0}, v{U1}')
                e('    v_lshlrev_b32 v22, 16, v20             ; g0')
                e('    v_and_b32 v23, s49, v20                ; g1')
                e('    v_lshlrev_b32 v24, 16, v21             ; u0')
                e('    v_and_b32 v25, s49, v21                ; u1')
                e('    v_mul_f32 v26, s50, v22')
                e('    v_mul_f32 v27, s50, v23')
                e('    v_exp_f32 v26, v26')
                e('    v_exp_f32 v27, v27')
                e('    s_nop 0')
                e('    v_add_f32 v26, 1.0, v26')
                e('    v_add_f32 v27, 1.0, v27')
                e('    v_rcp_f32 v26, v26')
                e('    v_rcp_f32 v27, v27')
                e('    s_nop 0')
                e('    v_mul_f32 v26, v22, v26')
                e('    v_mul_f32 v27, v23, v27')
                e('    v_cvt_pk_bf16_f32 v28, v26, v27')
                e('    v_lshlrev_b32 v26, 16, v28')
                e('    v_and_b32 v27, s49, v28')
                e('    v_mul_f32 v26, v26, v24')
                e('    v_mul_f32 v27, v27, v25')
                e(f'    v_cvt_pk_bf16_f32 v{30+2*(q&1)+p}, v26, v27')
            e(f'    buffer_store_dwordx2 v[{30+2*(q&1)}:{31+2*(q&1)}], v3, s[20:23], 0 offen offset:{16*q}')
    else:
        e('    v_lshlrev_b32 v3, 12, v3               ; m*4096')
        e('    v_lshl_add_u32 v3, v4, 2, v3')
        e(f'    s_mul_i32 s48, s47, {256*1024*4}')
        e('    v_add_u32 v3, s48, v3')
        for q in range(4):
            e(f'    buffer_store_dwordx4 v[{ACC+4*q}:{ACC+4*q+3}], v3, s[20:23], 0 offen offset:{32*q}')
    e('    s_waitcnt vmcnt(0)')
    e('    s_endpgm')
    e(f'{name}_pf:')
    e(f'    s_mov_b32 s49, {pitchW}')
    e('    v_mul_lo_u32 v3, v1, s49')
    e('    s_lshl_b32 s48, s46, 7')
    e('    v_add_u32 v3, s48, v3')
    e('    s_lshl_b32 s48, s45, 6')
    e('    v_add_u32 v4, s48, v1')
    e(f'    s_mov_b32 s49, {pitchA}')
    e('    v_mul_lo_u32 v4, v4, s49')
    if mode == 1:
        e('    s_mov_b32 s24, 0'); e('    s_mov_b32 s25, 0')
    else:
        e(f'    s_mul_i32 s24, s47, {896*2}')
        e(f'    s_mul_i32 s25, s47, {896*pitchW}')
    for i in range(KS):
        for b in range(NB):
            e(f'    buffer_load_dword v5, v3, s[{12+4*b}:{15+4*b}], s25 offen')
        e(f'    buffer_load_dword v5, v4, s[8:11], s24 offen offset:{128*i}')
        e(f'    s_add_u32 s25, s25, {64*pitchW}')
    e('    s_endpgm')
    if mode == 1:
        e(f'{name}_pfdown:')
        e('    s_cmp_eq_u32 s42, 4')
        e(f'    s_cbranch_scc1 {name}_done')
        e('    s_mov_b32 s8, s34'); e('    s_and_b32 s9, s35, 0xffff'); e(f'    s_mov_b32 s10, {1024*3584*2}'); e('    s_mov_b32 s11, 0x20000')
        e('    s_sub_u32 s48, s2, 224')
        e('    s_lshl_b32 s48, s48, 2')
        e('    s_add_u32 s48, s48, s42')
        e(f'    s_mul_i32 s48, s48, {28*2048}')
        e('    v_lshlrev_b32 v3, 7, v1')
        e('    v_add_u32 v3, s48, v3')
        e('    s_mov_b32 s24, 0')
        for i in range(7):
            e('    buffer_load_dword v5, v3, s[8:11], s24 offen')
            e('    s_add_u32 s24, s24, 8192')
    e(f'{name}_done:')
    e('    s_endpgm')

def reduce_kernel(name):
    e(f'.globl {name}')
    e('.p2align 8')
    e(f'.type {name},@function')
    e(f'{name}:')
    e('    s_cmp_ge_u32 s2, 256')
    e(f'    s_cbranch_scc1 {name}_done')
    e('    s_load_dwordx2 s[36:37], s[0:1], 32    ; out')
    e('    s_load_dwordx2 s[40:41], s[0:1], 48    ; ws')
    e('    s_lshl_b32 s3, s2, 8')
    e('    v_add_u32 v1, s3, v0')
    e('    v_lshlrev_b32 v2, 4, v1')
    e('    v_lshlrev_b32 v3, 3, v1')
    e('    s_waitcnt lgkmcnt(0)')
    e(f'    s_add_u32 s8, s40, {WS_P_OFF}'); e('    s_addc_u32 s9, s41, 0'); e('    s_and_b32 s9, s9, 0xffff'); e(f'    s_mov_b32 s10, {P_BYTES}'); e('    s_mov_b32 s11, 0x20000')
    e('    s_mov_b32 s12, s36'); e('    s_and_b32 s13, s37, 0xffff'); e(f'    s_mov_b32 s14, {256*1024*2}'); e('    s_mov_b32 s15, 0x20000')
    for s in range(4):
        e(f'    s_mov_b32 s16, {s*256*1024*4}')
        e(f'    buffer_load_dwordx4 v[{4+4*s}:{7+4*s}], v2, s[8:11], s16 offen')
    e('    s_waitcnt vmcnt(2)')
    for i in range(4): e(f'    v_add_f32 v{4+i}, v{4+i}, v{8+i}')
    e('    s_waitcnt vmcnt(1)')
    for i in range(4): e(f'    v_add_f32 v{4+i}, v{4+i}, v{12+i}')
    e('    s_waitcnt vmcnt(0)')
    for i in range(4): e(f'    v_add_f32 v{4+i}, v{4+i}, v{16+i}')
    e('    v_cvt_pk_bf16_f32 v20, v4, v5')
    e('    v_cvt_pk_bf16_f32 v21, v6, v7')
    e('    buffer_store_dwordx2 v[20:21], v3, s[12:15], 0 offen')
    e('    s_waitcnt vmcnt(0)')
    e(f'{name}_done:')
    e('    s_endpgm')

def kd(name, vgpr):
    e(f'.amdhsa_kernel {name}')
    e(f'  .amdhsa_next_free_vgpr {vgpr}')
    e('  .amdhsa_next_free_sgpr 64')
    e(f'  .amdhsa_accum_offset {(vgpr+3)//4*4}')
    e('  .amdhsa_group_segment_fixed_size 0')
    e('  .amdhsa_kernarg_size 56')
    e('  .amdhsa_user_sgpr_count 2')
    e('  .amdhsa_user_sgpr_kernarg_segment_ptr 1')
    e('  .amdhsa_system_sgpr_workgroup_id_x 1')
    e('.end_amdhsa_kernel')

K1 = 'standalone__swiglu_ffn__sampling_kernel'
K2 = 'ffn_down_kernel'
K3 = 'ffn_reduce_kernel'
S1, S2 = 6, 9
e(HEADER.rstrip('\n'))
e(f'; @launch kernel={K1} grid=(256,1,1) block=(320,1,1) lds={S1*24576}')
e(f'; @launch kernel={K2} grid=(256,1,1) block=(320,1,1) lds={S2*16384}')
e(f'; @launch kernel={K3} grid=(256,1,1) block=(256,1,1) lds=0')
e('.amdgcn_target "amdgcn-amd-amdhsa--gfx950"')
e('.text')
gemm_kernel(K1, 2, 16, S1, 2048, 7168, 1)
gemm_kernel(K2, 1, 14, S2, 7168, 2048, 2)
reduce_kernel(K3)
e('.section .rodata,"a"')
e('.p2align 6')
kd(K1, 104); e(".p2align 6"); kd(K2, 104); e('.p2align 6'); kd(K3, 24)
open(sys.argv[1] if len(sys.argv) > 1 else 'standalone__swiglu_ffn__sampling.s', 'w').write('\n'.join(L)+'\n')
```

```python
import sys

HEADER = open('standalone__swiglu_ffn__sampling.s.ref').read().split('; Override launch geometry')[0]

L = []
def e(s=''): L.append(s)

WS_H_OFF = 0
WS_P_OFF = 2*1024*1024
H_BYTES = 256*3584*2
P_BYTES = 4*256*1024*4

def gemm_kernel(name, NB, KS, S, pitchA, pitchW, mode):
    stage_bytes = 8192*(1+NB)
    LPS = 2*(1+NB)
    e(f'.globl {name}')
    e('.p2align 8')
    e(f'.type {name},@function')
    e(f'{name}:')
    nwg = 256
    e(f'    s_cmp_ge_u32 s2, {nwg}')
    e(f'    s_cbranch_scc1 {name}_done')
    e('    s_load_dwordx4 s[28:31], s[0:1], 0     ; x, w_gate')
    e('    s_load_dwordx4 s[32:35], s[0:1], 16')
    e('    s_load_dwordx4 s[36:39], s[0:1], 32')
    e('    s_load_dwordx2 s[40:41], s[0:1], 48    ; ws')
    e('    v_and_b32 v1, 63, v0                   ; lane')
    e('    v_lshrrev_b32 v2, 6, v0                ; wave')
    e('    s_nop 0')
    e('    v_readfirstlane_b32 s42, v2')
    e('    s_and_b32 s43, s2, 7                   ; xcd-group')
    e('    s_lshr_b32 s44, s2, 3                  ; j')
    e('    s_and_b32 s45, s44, 3                  ; mblk')
    e('    s_lshr_b32 s46, s44, 2                 ; j>>2')
    if mode == 1:
        e('    s_lshl_b32 s46, s46, 3')
        e('    s_add_u32 s46, s46, s43')
    else:
        e('    s_and_b32 s47, s43, 1')
        e('    s_lshl_b32 s47, s47, 3')
        e('    s_add_u32 s46, s46, s47')
        e('    s_lshr_b32 s47, s43, 1                 ; split')
    e('    s_waitcnt lgkmcnt(0)')
    if mode == 1:
        e('    s_mov_b32 s8, s28'); e('    s_and_b32 s9, s29, 0xffff'); e(f'    s_mov_b32 s10, {256*1024*2}'); e('    s_mov_b32 s11, 0x20000')
        e('    s_mov_b32 s12, s30'); e('    s_and_b32 s13, s31, 0xffff'); e(f'    s_mov_b32 s14, {1024*3584*2}'); e('    s_mov_b32 s15, 0x20000')
        e('    s_mov_b32 s16, s32'); e('    s_and_b32 s17, s33, 0xffff'); e(f'    s_mov_b32 s18, {1024*3584*2}'); e('    s_mov_b32 s19, 0x20000')
        e(f'    s_add_u32 s20, s40, {WS_H_OFF}'); e('    s_addc_u32 s21, s41, 0'); e('    s_and_b32 s21, s21, 0xffff'); e(f'    s_mov_b32 s22, {H_BYTES}'); e('    s_mov_b32 s23, 0x20000')
    else:
        e(f'    s_add_u32 s8, s40, {WS_H_OFF}'); e('    s_addc_u32 s9, s41, 0'); e('    s_and_b32 s9, s9, 0xffff'); e(f'    s_mov_b32 s10, {H_BYTES}'); e('    s_mov_b32 s11, 0x20000')
        e('    s_mov_b32 s12, s34'); e('    s_and_b32 s13, s35, 0xffff'); e(f'    s_mov_b32 s14, {1024*3584*2}'); e('    s_mov_b32 s15, 0x20000')
        e(f'    s_add_u32 s20, s40, {WS_P_OFF}'); e('    s_addc_u32 s21, s41, 0'); e('    s_and_b32 s21, s21, 0xffff'); e(f'    s_mov_b32 s22, {P_BYTES}'); e('    s_mov_b32 s23, 0x20000')
    if mode == 1:
        e('    s_cmp_ge_u32 s2, 224')
        e(f'    s_cbranch_scc1 {name}_pfdown')
    e('    v_and_b32 v2, 3, v2')
    e('    v_lshrrev_b32 v3, 3, v1                ; l>>3')
    e('    v_lshl_add_u32 v3, v2, 4, v3           ; r0 = 16w + (l>>3)')
    e('    v_and_b32 v4, 7, v1                    ; pos')
    e('    v_lshrrev_b32 v5, 4, v1                ; l>>4')
    e('    v_xor_b32 v6, v4, v5                   ; c (h=0)')
    e('    v_xor_b32 v7, 4, v6                    ; c (h=1)')
    e('    s_lshl_b32 s48, s45, 6                 ; m0')
    e('    v_add_u32 v8, s48, v3')
    e(f'    s_mov_b32 s49, {pitchA}')
    e('    v_mul_lo_u32 v8, v8, s49')
    e(f'    v_add_u32 v9, {8*pitchA}, v8')
    e('    v_lshl_add_u32 v8, v6, 4, v8           ; A voff h=0')
    e('    v_lshl_add_u32 v9, v7, 4, v9           ; A voff h=1')
    e('    v_lshrrev_b32 v10, 1, v4')
    e('    v_and_b32 v11, 2, v3')
    e('    v_xor_b32 v10, v10, v11                ; nb')
    e('    v_lshlrev_b32 v10, 5, v10')
    e('    v_and_b32 v11, 1, v4')
    e('    v_lshl_add_u32 v10, v11, 4, v10')
    e(f'    s_mov_b32 s49, {pitchW}')
    e('    v_mul_lo_u32 v11, v3, s49')
    e('    v_add_u32 v10, v10, v11')
    e('    s_lshl_b32 s48, s46, 7                 ; nblk*128')
    e('    v_add_u32 v10, s48, v10                ; W voff h=0')
    e(f'    v_add_u32 v11, {8*pitchW}, v10         ; W voff h=1')
    if mode == 1:
        e('    s_mov_b32 s24, 0'); e('    s_mov_b32 s25, 0')
    else:
        e(f'    s_mul_i32 s24, s47, {896*2}')
        e(f'    s_mul_i32 s25, s47, {896*pitchW}')
    e('    s_and_b32 s26, s42, 3')
    e('    s_lshl_b32 s26, s26, 11')
    e('    s_cmp_ge_u32 s42, 4')
    e(f'    s_cbranch_scc1 {name}_loader')
    e('    v_lshrrev_b32 v3, 1, v2                ; wm')
    e('    v_and_b32 v4, 31, v1')
    e('    v_lshl_add_u32 v3, v3, 5, v4')
    e('    v_lshrrev_b32 v4, 1, v3')
    e('    v_and_b32 v4, 7, v4')
    e('    v_lshrrev_b32 v5, 5, v1                ; hi')
    e('    v_xor_b32 v4, v4, v5                   ; hi^s')
    e('    v_lshlrev_b32 v5, 7, v3                ; m*128')
    for kk in range(4):
        e(f'    v_xor_b32 v6, {2*kk}, v4')
        e(f'    v_lshl_add_u32 v{12+kk}, v6, 4, v5')
    e('    v_lshrrev_b32 v3, 4, v1                ; g')
    e('    v_lshrrev_b32 v4, 2, v1')
    e('    v_and_b32 v4, 3, v4                    ; r')
    e('    v_and_b32 v5, 3, v1                    ; c')
    e('    v_and_b32 v6, 1, v2                    ; wn')
    e('    v_and_b32 v7, 1, v3')
    e('    v_lshl_add_u32 v6, v6, 1, v7           ; nb')
    e('    v_and_b32 v7, 2, v4')
    e('    v_xor_b32 v6, v6, v7')
    e('    v_lshrrev_b32 v3, 1, v3')
    e('    v_lshl_add_u32 v3, v3, 3, v4           ; krow')
    e('    v_lshlrev_b32 v3, 7, v3')
    e('    v_lshl_add_u32 v3, v6, 5, v3')
    e('    v_lshl_add_u32 v16, v5, 3, v3')
    e('    v_add_u32 v16, 8192, v16')
    ACC = 72
    for i in range(16*NB):
        e(f'    v_mov_b32 v{ACC+i}, 0')
    def issue(stage):
        buf = (stage % S)*stage_bytes
        for h in range(2):
            e(f'    s_add_u32 m0, s26, {buf + h*1024}')
            e('    s_nop 0')
            e(f'    buffer_load_dwordx4 v{8+h}, s[8:11], s24 offen lds')
        for b in range(NB):
            for h in range(2):
                e(f'    s_add_u32 m0, s26, {buf + 8192*(1+b) + h*1024}')
                e('    s_nop 0')
                e(f'    buffer_load_dwordx4 v{10+h}, s[{12+4*b}:{15+4*b}], s25 offen lds')
        e('    s_add_u32 s24, s24, 128')
        e(f'    s_add_u32 s25, s25, {64*pitchW}')
    FR = 20
    per = 4+4*NB
    cur_buf = 0
    for k in range(KS):
        issued = min(KS, k+S-1)
        e(f'    ; ---- k-step {k}')
        e('    s_barrier')
        nb = (k % S)*stage_bytes
        if nb != cur_buf:
            d = nb-cur_buf
            for r in (12,13,14,15,16):
                if d > 0: e(f'    v_add_u32 v{r}, {d}, v{r}')
                else: e(f'    v_subrev_u32 v{r}, {-d}, v{r}')
            cur_buf = nb
        def reads(kk):
            b0 = FR+per*kk
            e(f'    ds_read_b128 v[{b0}:{b0+3}], v{12+kk}')
            for b in range(NB):
                for t in range(2):
                    e(f'    ds_read_b64_tr_b16 v[{b0+4+4*b+2*t}:{b0+5+4*b+2*t}], v16 offset:{8192*b + kk*2048 + t*512}')
        def mfmas(kk):
            b0 = FR+per*kk
            for b in range(NB):
                e(f'    v_mfma_f32_32x32x16_bf16 v[{ACC+16*b}:{ACC+16*b+15}], v[{b0+4+4*b}:{b0+7+4*b}], v[{b0}:{b0+3}], v[{ACC+16*b}:{ACC+16*b+15}]')
        npr = 1+2*NB
        reads(0); reads(1)
        e(f'    s_waitcnt lgkmcnt({npr})'); mfmas(0)
        reads(2)
        e(f'    s_waitcnt lgkmcnt({npr})'); mfmas(1)
        reads(3)
        e(f'    s_waitcnt lgkmcnt({npr})'); mfmas(2)
        e('    s_waitcnt lgkmcnt(0)'); mfmas(3)
    e('    s_nop 15')
    e('    s_nop 7')
    e('    v_lshrrev_b32 v3, 1, v2')
    e('    v_and_b32 v4, 31, v1')
    e('    v_lshl_add_u32 v3, v3, 5, v4')
    e('    s_lshl_b32 s48, s45, 6')
    e('    v_add_u32 v3, s48, v3                  ; m')
    e('    v_and_b32 v4, 1, v2')
    e('    v_lshlrev_b32 v4, 5, v4')
    e('    v_lshrrev_b32 v5, 5, v1')
    e('    v_lshl_add_u32 v4, v5, 2, v4')
    e('    s_lshl_b32 s48, s46, 6')
    e('    v_add_u32 v4, s48, v4                  ; n base')
    if mode == 1:
        e('    s_mov_b32 s49, 7168')
        e('    v_mul_lo_u32 v3, v3, s49')
        e('    v_lshl_add_u32 v3, v4, 1, v3')
        e('    s_mov_b32 s49, 0xffff0000')
        e('    s_mov_b32 s50, 0xbfb8aa3b              ; -log2(e)')
        for q in range(4):
            for p in range(2):
                r = 4*q+2*p
                G0, G1, U0, U1 = ACC+r, ACC+r+1, ACC+16+r, ACC+17+r
                e(f'    v_cvt_pk_bf16_f32 v20, v{G0}, v{G1}')
                e(f'    v_cvt_pk_bf16_f32 v21, v{U0}, v{U1}')
                e('    v_lshlrev_b32 v22, 16, v20             ; g0')
                e('    v_and_b32 v23, s49, v20                ; g1')
                e('    v_lshlrev_b32 v24, 16, v21             ; u0')
                e('    v_and_b32 v25, s49, v21                ; u1')
                e('    v_mul_f32 v26, s50, v22')
                e('    v_mul_f32 v27, s50, v23')
                e('    v_exp_f32 v26, v26')
                e('    v_exp_f32 v27, v27')
                e('    s_nop 0')
                e('    v_add_f32 v26, 1.0, v26')
                e('    v_add_f32 v27, 1.0, v27')
                e('    v_rcp_f32 v26, v26')
                e('    v_rcp_f32 v27, v27')
                e('    s_nop 0')
                e('    v_mul_f32 v26, v22, v26')
                e('    v_mul_f32 v27, v23, v27')
                e('    v_cvt_pk_bf16_f32 v28, v26, v27')
                e('    v_lshlrev_b32 v26, 16, v28')
                e('    v_and_b32 v27, s49, v28')
                e('    v_mul_f32 v26, v26, v24')
                e('    v_mul_f32 v27, v27, v25')
                e(f'    v_cvt_pk_bf16_f32 v{30+2*(q&1)+p}, v26, v27')
            e(f'    buffer_store_dwordx2 v[{30+2*(q&1)}:{31+2*(q&1)}], v3, s[20:23], 0 offen offset:{16*q}')
    else:
        e('    v_lshlrev_b32 v3, 12, v3               ; m*4096')
        e('    v_lshl_add_u32 v3, v4, 2, v3')
        e(f'    s_mul_i32 s48, s47, {256*1024*4}')
        e('    v_add_u32 v3, s48, v3')
        for q in range(4):
            e(f'    buffer_store_dwordx4 v[{ACC+4*q}:{ACC+4*q+3}], v3, s[20:23], 0 offen offset:{32*q}')
    e('    s_waitcnt vmcnt(0)')
    e('    s_endpgm')
    e(f'{name}_loader:')
    for st in range(S-1):
        issue(st)
    for k in range(KS):
        issued = min(KS, k+S-1)
        e(f'    s_waitcnt vmcnt({(issued-(k+1))*LPS})')
        e('    s_barrier')
        if k+S-1 < KS:
            issue(k+S-1)
    e('    s_endpgm')
    if mode == 1:
        e(f'{name}_pfdown:')
        e('    s_cmp_ge_u32 s42, 4')
        e(f'    s_cbranch_scc1 {name}_done')
        e('    s_mov_b32 s8, s34'); e('    s_and_b32 s9, s35, 0xffff'); e(f'    s_mov_b32 s10, {1024*3584*2}'); e('    s_mov_b32 s11, 0x20000')
        e('    s_sub_u32 s48, s2, 224')
        e('    s_lshl_b32 s48, s48, 2')
        e('    s_add_u32 s48, s48, s42')
        e(f'    s_mul_i32 s48, s48, {28*2048}')
        e('    v_lshlrev_b32 v3, 7, v1')
        e('    v_add_u32 v3, s48, v3')
        e('    s_mov_b32 s24, 0')
        for i in range(7):
            e('    buffer_load_dword v5, v3, s[8:11], s24 offen')
            e('    s_add_u32 s24, s24, 8192')
    e(f'{name}_done:')
    e('    s_endpgm')

def reduce_kernel(name):
    e(f'.globl {name}')
    e('.p2align 8')
    e(f'.type {name},@function')
    e(f'{name}:')
    e('    s_cmp_ge_u32 s2, 256')
    e(f'    s_cbranch_scc1 {name}_done')
    e('    s_load_dwordx2 s[36:37], s[0:1], 32    ; out')
    e('    s_load_dwordx2 s[40:41], s[0:1], 48    ; ws')
    e('    s_lshl_b32 s3, s2, 8')
    e('    v_add_u32 v1, s3, v0')
    e('    v_lshlrev_b32 v2, 4, v1')
    e('    v_lshlrev_b32 v3, 3, v1')
    e('    s_waitcnt lgkmcnt(0)')
    e(f'    s_add_u32 s8, s40, {WS_P_OFF}'); e('    s_addc_u32 s9, s41, 0'); e('    s_and_b32 s9, s9, 0xffff'); e(f'    s_mov_b32 s10, {P_BYTES}'); e('    s_mov_b32 s11, 0x20000')
    e('    s_mov_b32 s12, s36'); e('    s_and_b32 s13, s37, 0xffff'); e(f'    s_mov_b32 s14, {256*1024*2}'); e('    s_mov_b32 s15, 0x20000')
    for s in range(4):
        e(f'    s_mov_b32 s16, {s*256*1024*4}')
        e(f'    buffer_load_dwordx4 v[{4+4*s}:{7+4*s}], v2, s[8:11], s16 offen')
    e('    s_waitcnt vmcnt(2)')
    for i in range(4): e(f'    v_add_f32 v{4+i}, v{4+i}, v{8+i}')
    e('    s_waitcnt vmcnt(1)')
    for i in range(4): e(f'    v_add_f32 v{4+i}, v{4+i}, v{12+i}')
    e('    s_waitcnt vmcnt(0)')
    for i in range(4): e(f'    v_add_f32 v{4+i}, v{4+i}, v{16+i}')
    e('    v_cvt_pk_bf16_f32 v20, v4, v5')
    e('    v_cvt_pk_bf16_f32 v21, v6, v7')
    e('    buffer_store_dwordx2 v[20:21], v3, s[12:15], 0 offen')
    e('    s_waitcnt vmcnt(0)')
    e(f'{name}_done:')
    e('    s_endpgm')

def kd(name, vgpr):
    e(f'.amdhsa_kernel {name}')
    e(f'  .amdhsa_next_free_vgpr {vgpr}')
    e('  .amdhsa_next_free_sgpr 64')
    e(f'  .amdhsa_accum_offset {(vgpr+3)//4*4}')
    e('  .amdhsa_group_segment_fixed_size 0')
    e('  .amdhsa_kernarg_size 56')
    e('  .amdhsa_user_sgpr_count 2')
    e('  .amdhsa_user_sgpr_kernarg_segment_ptr 1')
    e('  .amdhsa_system_sgpr_workgroup_id_x 1')
    e('.end_amdhsa_kernel')

K1 = 'standalone__swiglu_ffn__sampling_kernel'
K2 = 'ffn_down_kernel'
K3 = 'ffn_reduce_kernel'
S1, S2 = 6, 9
e(HEADER.rstrip('\n'))
e(f'; @launch kernel={K1} grid=(256,1,1) block=(512,1,1) lds={S1*24576}')
e(f'; @launch kernel={K2} grid=(256,1,1) block=(512,1,1) lds={S2*16384}')
e(f'; @launch kernel={K3} grid=(256,1,1) block=(256,1,1) lds=0')
e('.amdgcn_target "amdgcn-amd-amdhsa--gfx950"')
e('.text')
gemm_kernel(K1, 2, 16, S1, 2048, 7168, 1)
gemm_kernel(K2, 1, 14, S2, 7168, 2048, 2)
reduce_kernel(K3)
e('.section .rodata,"a"')
e('.p2align 6')
kd(K1, 104); e(".p2align 6"); kd(K2, 104); e('.p2align 6'); kd(K3, 24)
open(sys.argv[1] if len(sys.argv) > 1 else 'standalone__swiglu_ffn__sampling.s', 'w').write('\n'.join(L)+'\n')
```

```python
import sys

HEADER = open('standalone__swiglu_ffn__sampling.s.ref').read().split('; Override launch geometry')[0]

L = []
def e(s=''): L.append(s)

WS_H_OFF = 0
WS_P_OFF = 2*1024*1024
H_BYTES = 256*3584*2
P_BYTES = 4*256*1024*4

def gemm_kernel(name, NB, KS, S, pitchA, pitchW, mode, D):
    stage_bytes = 8192*(1+NB)
    LPS = 2*(1+NB)
    e(f'.globl {name}')
    e('.p2align 8')
    e(f'.type {name},@function')
    e(f'{name}:')
    nwg = 256
    e(f'    s_cmp_ge_u32 s2, {nwg}')
    e(f'    s_cbranch_scc1 {name}_done')
    e('    s_load_dwordx4 s[28:31], s[0:1], 0     ; x, w_gate')
    e('    s_load_dwordx4 s[32:35], s[0:1], 16')
    e('    s_load_dwordx4 s[36:39], s[0:1], 32')
    e('    s_load_dwordx2 s[40:41], s[0:1], 48    ; ws')
    e('    v_and_b32 v1, 63, v0                   ; lane')
    e('    v_lshrrev_b32 v2, 6, v0                ; wave')
    e('    s_nop 0')
    e('    v_readfirstlane_b32 s42, v2')
    e('    s_and_b32 s43, s2, 7                   ; xcd-group')
    e('    s_lshr_b32 s44, s2, 3                  ; j')
    e('    s_and_b32 s45, s44, 3                  ; mblk')
    e('    s_lshr_b32 s46, s44, 2                 ; j>>2')
    if mode == 1:
        e('    s_lshl_b32 s46, s46, 3')
        e('    s_add_u32 s46, s46, s43')
    else:
        e('    s_and_b32 s47, s43, 1')
        e('    s_lshl_b32 s47, s47, 3')
        e('    s_add_u32 s46, s46, s47')
        e('    s_lshr_b32 s47, s43, 1                 ; split')
    e('    s_waitcnt lgkmcnt(0)')
    if mode == 1:
        e('    s_mov_b32 s8, s28'); e('    s_and_b32 s9, s29, 0xffff'); e(f'    s_mov_b32 s10, {256*1024*2}'); e('    s_mov_b32 s11, 0x20000')
        e('    s_mov_b32 s12, s30'); e('    s_and_b32 s13, s31, 0xffff'); e(f'    s_mov_b32 s14, {1024*3584*2}'); e('    s_mov_b32 s15, 0x20000')
        e('    s_mov_b32 s16, s32'); e('    s_and_b32 s17, s33, 0xffff'); e(f'    s_mov_b32 s18, {1024*3584*2}'); e('    s_mov_b32 s19, 0x20000')
        e(f'    s_add_u32 s20, s40, {WS_H_OFF}'); e('    s_addc_u32 s21, s41, 0'); e('    s_and_b32 s21, s21, 0xffff'); e(f'    s_mov_b32 s22, {H_BYTES}'); e('    s_mov_b32 s23, 0x20000')
    else:
        e(f'    s_add_u32 s8, s40, {WS_H_OFF}'); e('    s_addc_u32 s9, s41, 0'); e('    s_and_b32 s9, s9, 0xffff'); e(f'    s_mov_b32 s10, {H_BYTES}'); e('    s_mov_b32 s11, 0x20000')
        e('    s_mov_b32 s12, s34'); e('    s_and_b32 s13, s35, 0xffff'); e(f'    s_mov_b32 s14, {1024*3584*2}'); e('    s_mov_b32 s15, 0x20000')
        e(f'    s_add_u32 s20, s40, {WS_P_OFF}'); e('    s_addc_u32 s21, s41, 0'); e('    s_and_b32 s21, s21, 0xffff'); e(f'    s_mov_b32 s22, {P_BYTES}'); e('    s_mov_b32 s23, 0x20000')
    if mode == 1:
        e('    s_cmp_ge_u32 s2, 224')
        e(f'    s_cbranch_scc1 {name}_pfdown')
    e('    v_and_b32 v2, 3, v2')
    e('    v_lshrrev_b32 v3, 3, v1                ; l>>3')
    e('    v_lshl_add_u32 v3, v2, 4, v3           ; r0 = 16w + (l>>3)')
    e('    v_and_b32 v4, 7, v1                    ; pos')
    e('    v_lshrrev_b32 v5, 4, v1                ; l>>4')
    e('    v_xor_b32 v6, v4, v5                   ; c (h=0)')
    e('    v_xor_b32 v7, 4, v6                    ; c (h=1)')
    e('    s_lshl_b32 s48, s45, 6                 ; m0')
    e('    v_add_u32 v8, s48, v3')
    e(f'    s_mov_b32 s49, {pitchA}')
    e('    v_mul_lo_u32 v8, v8, s49')
    e(f'    v_add_u32 v9, {8*pitchA}, v8')
    e('    v_lshl_add_u32 v8, v6, 4, v8           ; A voff h=0')
    e('    v_lshl_add_u32 v9, v7, 4, v9           ; A voff h=1')
    e('    v_lshrrev_b32 v10, 1, v4')
    e('    v_and_b32 v11, 2, v3')
    e('    v_xor_b32 v10, v10, v11                ; nb')
    e('    v_lshlrev_b32 v10, 5, v10')
    e('    v_and_b32 v11, 1, v4')
    e('    v_lshl_add_u32 v10, v11, 4, v10')
    e(f'    s_mov_b32 s49, {pitchW}')
    e('    v_mul_lo_u32 v11, v3, s49')
    e('    v_add_u32 v10, v10, v11')
    e('    s_lshl_b32 s48, s46, 7                 ; nblk*128')
    e('    v_add_u32 v10, s48, v10                ; W voff h=0')
    e(f'    v_add_u32 v11, {8*pitchW}, v10         ; W voff h=1')
    if mode == 1:
        e('    s_mov_b32 s24, 0'); e('    s_mov_b32 s25, 0')
    else:
        e(f'    s_mul_i32 s24, s47, {896*2}')
        e(f'    s_mul_i32 s25, s47, {896*pitchW}')
    e('    s_and_b32 s26, s42, 3')
    e('    s_lshl_b32 s26, s26, 11')
    e('    s_cmp_ge_u32 s42, 4')
    e(f'    s_cbranch_scc1 {name}_loader')
    e('    v_lshrrev_b32 v3, 1, v2                ; wm')
    e('    v_and_b32 v4, 31, v1')
    e('    v_lshl_add_u32 v3, v3, 5, v4')
    e('    v_lshrrev_b32 v4, 1, v3')
    e('    v_and_b32 v4, 7, v4')
    e('    v_lshrrev_b32 v5, 5, v1                ; hi')
    e('    v_xor_b32 v4, v4, v5                   ; hi^s')
    e('    v_lshlrev_b32 v5, 7, v3                ; m*128')
    for kk in range(4):
        e(f'    v_xor_b32 v6, {2*kk}, v4')
        e(f'    v_lshl_add_u32 v{12+kk}, v6, 4, v5')
    e('    v_lshrrev_b32 v3, 4, v1                ; g')
    e('    v_lshrrev_b32 v4, 2, v1')
    e('    v_and_b32 v4, 3, v4                    ; r')
    e('    v_and_b32 v5, 3, v1                    ; c')
    e('    v_and_b32 v6, 1, v2                    ; wn')
    e('    v_and_b32 v7, 1, v3')
    e('    v_lshl_add_u32 v6, v6, 1, v7           ; nb')
    e('    v_and_b32 v7, 2, v4')
    e('    v_xor_b32 v6, v6, v7')
    e('    v_lshrrev_b32 v3, 1, v3')
    e('    v_lshl_add_u32 v3, v3, 3, v4           ; krow')
    e('    v_lshlrev_b32 v3, 7, v3')
    e('    v_lshl_add_u32 v3, v6, 5, v3')
    e('    v_lshl_add_u32 v16, v5, 3, v3')
    e('    v_add_u32 v16, 8192, v16')
    ACC = 72
    for i in range(16*NB):
        e(f'    v_mov_b32 v{ACC+i}, 0')
    RB = 32
    def gload(stage):
        rb = RB + (stage % D)*4*LPS
        for h in range(2):
            e(f'    buffer_load_dwordx4 v[{rb+4*h}:{rb+4*h+3}], v{8+h}, s[8:11], s24 offen')
        for b in range(NB):
            for h in range(2):
                r = rb+8+8*b+4*h
                e(f'    buffer_load_dwordx4 v[{r}:{r+3}], v{10+h}, s[{12+4*b}:{15+4*b}], s25 offen')
        e('    s_add_u32 s24, s24, 128')
        e(f'    s_add_u32 s25, s25, {64*pitchW}')
    def lwrite(stage):
        rb = RB + (stage % D)*4*LPS
        buf = (stage % S)*stage_bytes
        for i in range(LPS):
            e(f'    ds_write_b128 v17, v[{rb+4*i}:{rb+4*i+3}] offset:{buf + (i//2)*8192 + (i%2)*1024}')
    FR = 20
    per = 4+4*NB
    cur_buf = 0
    for k in range(KS):
        issued = min(KS, k+S-1)
        e(f'    ; ---- k-step {k}')
        e('    s_barrier')
        nb = (k % S)*stage_bytes
        if nb != cur_buf:
            d = nb-cur_buf
            for r in (12,13,14,15,16):
                if d > 0: e(f'    v_add_u32 v{r}, {d}, v{r}')
                else: e(f'    v_subrev_u32 v{r}, {-d}, v{r}')
            cur_buf = nb
        def reads(kk):
            b0 = FR+per*kk
            e(f'    ds_read_b128 v[{b0}:{b0+3}], v{12+kk}')
            for b in range(NB):
                for t in range(2):
                    e(f'    ds_read_b64_tr_b16 v[{b0+4+4*b+2*t}:{b0+5+4*b+2*t}], v16 offset:{8192*b + kk*2048 + t*512}')
        def mfmas(kk):
            b0 = FR+per*kk
            for b in range(NB):
                e(f'    v_mfma_f32_32x32x16_bf16 v[{ACC+16*b}:{ACC+16*b+15}], v[{b0+4+4*b}:{b0+7+4*b}], v[{b0}:{b0+3}], v[{ACC+16*b}:{ACC+16*b+15}]')
        npr = 1+2*NB
        reads(0); reads(1)
        e(f'    s_waitcnt lgkmcnt({npr})'); mfmas(0)
        reads(2)
        e(f'    s_waitcnt lgkmcnt({npr})'); mfmas(1)
        reads(3)
        e(f'    s_waitcnt lgkmcnt({npr})'); mfmas(2)
        e('    s_waitcnt lgkmcnt(0)'); mfmas(3)
    e('    s_nop 15')
    e('    s_nop 7')
    e('    v_lshrrev_b32 v3, 1, v2')
    e('    v_and_b32 v4, 31, v1')
    e('    v_lshl_add_u32 v3, v3, 5, v4')
    e('    s_lshl_b32 s48, s45, 6')
    e('    v_add_u32 v3, s48, v3                  ; m')
    e('    v_and_b32 v4, 1, v2')
    e('    v_lshlrev_b32 v4, 5, v4')
    e('    v_lshrrev_b32 v5, 5, v1')
    e('    v_lshl_add_u32 v4, v5, 2, v4')
    e('    s_lshl_b32 s48, s46, 6')
    e('    v_add_u32 v4, s48, v4                  ; n base')
    if mode == 1:
        e('    s_mov_b32 s49, 7168')
        e('    v_mul_lo_u32 v3, v3, s49')
        e('    v_lshl_add_u32 v3, v4, 1, v3')
        e('    s_mov_b32 s49, 0xffff0000')
        e('    s_mov_b32 s50, 0xbfb8aa3b              ; -log2(e)')
        for q in range(4):
            for p in range(2):
                r = 4*q+2*p
                G0, G1, U0, U1 = ACC+r, ACC+r+1, ACC+16+r, ACC+17+r
                e(f'    v_cvt_pk_bf16_f32 v20, v{G0}, v{G1}')
                e(f'    v_cvt_pk_bf16_f32 v21, v{U0}, v{U1}')
                e('    v_lshlrev_b32 v22, 16, v20             ; g0')
                e('    v_and_b32 v23, s49, v20                ; g1')
                e('    v_lshlrev_b32 v24, 16, v21             ; u0')
                e('    v_and_b32 v25, s49, v21                ; u1')
                e('    v_mul_f32 v26, s50, v22')
                e('    v_mul_f32 v27, s50, v23')
                e('    v_exp_f32 v26, v26')
                e('    v_exp_f32 v27, v27')
                e('    s_nop 0')
                e('    v_add_f32 v26, 1.0, v26')
                e('    v_add_f32 v27, 1.0, v27')
                e('    v_rcp_f32 v26, v26')
                e('    v_rcp_f32 v27, v27')
                e('    s_nop 0')
                e('    v_mul_f32 v26, v22, v26')
                e('    v_mul_f32 v27, v23, v27')
                e('    v_cvt_pk_bf16_f32 v28, v26, v27')
                e('    v_lshlrev_b32 v26, 16, v28')
                e('    v_and_b32 v27, s49, v28')
                e('    v_mul_f32 v26, v26, v24')
                e('    v_mul_f32 v27, v27, v25')
                e(f'    v_cvt_pk_bf16_f32 v{30+2*(q&1)+p}, v26, v27')
            e(f'    buffer_store_dwordx2 v[{30+2*(q&1)}:{31+2*(q&1)}], v3, s[20:23], 0 offen offset:{16*q}')
    else:
        e('    v_lshlrev_b32 v3, 12, v3               ; m*4096')
        e('    v_lshl_add_u32 v3, v4, 2, v3')
        e(f'    s_mul_i32 s48, s47, {256*1024*4}')
        e('    v_add_u32 v3, s48, v3')
        for q in range(4):
            e(f'    buffer_store_dwordx4 v[{ACC+4*q}:{ACC+4*q+3}], v3, s[20:23], 0 offen offset:{32*q}')
    e('    s_waitcnt vmcnt(0)')
    e('    s_endpgm')
    e(f'{name}_loader:')
    e('    v_lshlrev_b32 v17, 4, v1')
    e('    v_add_u32 v17, s26, v17')
    for st in range(min(D,KS)):
        gload(st)
    nissued = min(D,KS)
    for k in range(-1, KS-1):
        e(f'    s_waitcnt vmcnt({(nissued-(k+2))*LPS})')
        lwrite(k+1)
        e('    s_waitcnt lgkmcnt(0)')
        if nissued < KS:
            gload(nissued); nissued += 1
        e('    s_barrier')
    e('    s_endpgm')
    if mode == 1:
        e(f'{name}_pfdown:')
        e('    s_cmp_ge_u32 s42, 4')
        e(f'    s_cbranch_scc1 {name}_done')
        e('    s_mov_b32 s8, s34'); e('    s_and_b32 s9, s35, 0xffff'); e(f'    s_mov_b32 s10, {1024*3584*2}'); e('    s_mov_b32 s11, 0x20000')
        e('    s_sub_u32 s48, s2, 224')
        e('    s_lshl_b32 s48, s48, 2')
        e('    s_add_u32 s48, s48, s42')
        e(f'    s_mul_i32 s48, s48, {28*2048}')
        e('    v_lshlrev_b32 v3, 7, v1')
        e('    v_add_u32 v3, s48, v3')
        e('    s_mov_b32 s24, 0')
        for i in range(7):
            e('    buffer_load_dword v5, v3, s[8:11], s24 offen')
            e('    s_add_u32 s24, s24, 8192')
    e(f'{name}_done:')
    e('    s_endpgm')

def reduce_kernel(name):
    e(f'.globl {name}')
    e('.p2align 8')
    e(f'.type {name},@function')
    e(f'{name}:')
    e('    s_cmp_ge_u32 s2, 256')
    e(f'    s_cbranch_scc1 {name}_done')
    e('    s_load_dwordx2 s[36:37], s[0:1], 32    ; out')
    e('    s_load_dwordx2 s[40:41], s[0:1], 48    ; ws')
    e('    s_lshl_b32 s3, s2, 8')
    e('    v_add_u32 v1, s3, v0')
    e('    v_lshlrev_b32 v2, 4, v1')
    e('    v_lshlrev_b32 v3, 3, v1')
    e('    s_waitcnt lgkmcnt(0)')
    e(f'    s_add_u32 s8, s40, {WS_P_OFF}'); e('    s_addc_u32 s9, s41, 0'); e('    s_and_b32 s9, s9, 0xffff'); e(f'    s_mov_b32 s10, {P_BYTES}'); e('    s_mov_b32 s11, 0x20000')
    e('    s_mov_b32 s12, s36'); e('    s_and_b32 s13, s37, 0xffff'); e(f'    s_mov_b32 s14, {256*1024*2}'); e('    s_mov_b32 s15, 0x20000')
    for s in range(4):
        e(f'    s_mov_b32 s16, {s*256*1024*4}')
        e(f'    buffer_load_dwordx4 v[{4+4*s}:{7+4*s}], v2, s[8:11], s16 offen')
    e('    s_waitcnt vmcnt(2)')
    for i in range(4): e(f'    v_add_f32 v{4+i}, v{4+i}, v{8+i}')
    e('    s_waitcnt vmcnt(1)')
    for i in range(4): e(f'    v_add_f32 v{4+i}, v{4+i}, v{12+i}')
    e('    s_waitcnt vmcnt(0)')
    for i in range(4): e(f'    v_add_f32 v{4+i}, v{4+i}, v{16+i}')
    e('    v_cvt_pk_bf16_f32 v20, v4, v5')
    e('    v_cvt_pk_bf16_f32 v21, v6, v7')
    e('    buffer_store_dwordx2 v[20:21], v3, s[12:15], 0 offen')
    e('    s_waitcnt vmcnt(0)')
    e(f'{name}_done:')
    e('    s_endpgm')

def kd(name, vgpr):
    e(f'.amdhsa_kernel {name}')
    e(f'  .amdhsa_next_free_vgpr {vgpr}')
    e('  .amdhsa_next_free_sgpr 64')
    e(f'  .amdhsa_accum_offset {(vgpr+3)//4*4}')
    e('  .amdhsa_group_segment_fixed_size 0')
    e('  .amdhsa_kernarg_size 56')
    e('  .amdhsa_user_sgpr_count 2')
    e('  .amdhsa_user_sgpr_kernarg_segment_ptr 1')
    e('  .amdhsa_system_sgpr_workgroup_id_x 1')
    e('.end_amdhsa_kernel')

K1 = 'standalone__swiglu_ffn__sampling_kernel'
K2 = 'ffn_down_kernel'
K3 = 'ffn_reduce_kernel'
S1, S2 = 2, 2
e(HEADER.rstrip('\n'))
e(f'; @launch kernel={K1} grid=(256,1,1) block=(512,1,1) lds={S1*24576}')
e(f'; @launch kernel={K2} grid=(256,1,1) block=(512,1,1) lds={S2*16384}')
e(f'; @launch kernel={K3} grid=(256,1,1) block=(256,1,1) lds=0')
e('.amdgcn_target "amdgcn-amd-amdhsa--gfx950"')
e('.text')
gemm_kernel(K1, 2, 16, S1, 2048, 7168, 1, 9)
gemm_kernel(K2, 1, 14, S2, 7168, 2048, 2, 14)
reduce_kernel(K3)
e('.section .rodata,"a"')
e('.p2align 6')
kd(K1, 256); e(".p2align 6"); kd(K2, 256); e('.p2align 6'); kd(K3, 24)
open(sys.argv[1] if len(sys.argv) > 1 else 'standalone__swiglu_ffn__sampling.s', 'w').write('\n'.join(L)+'\n')
```

```python
import sys
DBG = len(sys.argv) > 2

HEADER = open('standalone__swiglu_ffn__sampling.s.ref').read().split('; Override launch geometry')[0]

L = []
def e(s=''): L.append(s)

WS_H_OFF = 0
WS_P_OFF = 2*1024*1024
H_BYTES = 256*3584*2
P_BYTES = 4*256*1024*4

def gemm_kernel(name, NB, KS, S, pitchA, pitchW, mode, D):
    stage_bytes = 8192*(1+NB)
    LPS = 2*(1+NB)
    e(f'.globl {name}')
    e('.p2align 8')
    e(f'.type {name},@function')
    e(f'{name}:')
    nwg = 256
    e(f'    s_cmp_ge_u32 s2, {nwg}')
    e(f'    s_cbranch_scc1 {name}_done')
    e('    s_load_dwordx4 s[28:31], s[0:1], 0     ; x, w_gate')
    e('    s_load_dwordx4 s[32:35], s[0:1], 16')
    e('    s_load_dwordx4 s[36:39], s[0:1], 32')
    e('    s_load_dwordx2 s[40:41], s[0:1], 48    ; ws')
    e('    v_and_b32 v1, 63, v0                   ; lane')
    e('    v_lshrrev_b32 v2, 6, v0                ; wave')
    e('    s_nop 0')
    e('    v_readfirstlane_b32 s42, v2')
    e('    s_and_b32 s43, s2, 7                   ; xcd-group')
    e('    s_lshr_b32 s44, s2, 3                  ; j')
    e('    s_and_b32 s45, s44, 3                  ; mblk')
    e('    s_lshr_b32 s46, s44, 2                 ; j>>2')
    if mode == 1:
        e('    s_lshl_b32 s46, s46, 3')
        e('    s_add_u32 s46, s46, s43')
    else:
        e('    s_and_b32 s47, s43, 1')
        e('    s_lshl_b32 s47, s47, 3')
        e('    s_add_u32 s46, s46, s47')
        e('    s_lshr_b32 s47, s43, 1                 ; split')
    e('    s_waitcnt lgkmcnt(0)')
    if mode == 1:
        e('    s_mov_b32 s8, s28'); e('    s_and_b32 s9, s29, 0xffff'); e(f'    s_mov_b32 s10, {256*1024*2}'); e('    s_mov_b32 s11, 0x20000')
        e('    s_mov_b32 s12, s30'); e('    s_and_b32 s13, s31, 0xffff'); e(f'    s_mov_b32 s14, {1024*3584*2}'); e('    s_mov_b32 s15, 0x20000')
        e('    s_mov_b32 s16, s32'); e('    s_and_b32 s17, s33, 0xffff'); e(f'    s_mov_b32 s18, {1024*3584*2}'); e('    s_mov_b32 s19, 0x20000')
        e(f'    s_add_u32 s20, s40, {WS_H_OFF}'); e('    s_addc_u32 s21, s41, 0'); e('    s_and_b32 s21, s21, 0xffff'); e(f'    s_mov_b32 s22, {H_BYTES}'); e('    s_mov_b32 s23, 0x20000')
    else:
        e(f'    s_add_u32 s8, s40, {WS_H_OFF}'); e('    s_addc_u32 s9, s41, 0'); e('    s_and_b32 s9, s9, 0xffff'); e(f'    s_mov_b32 s10, {H_BYTES}'); e('    s_mov_b32 s11, 0x20000')
        e('    s_mov_b32 s12, s34'); e('    s_and_b32 s13, s35, 0xffff'); e(f'    s_mov_b32 s14, {1024*3584*2}'); e('    s_mov_b32 s15, 0x20000')
        e(f'    s_add_u32 s20, s40, {WS_P_OFF}'); e('    s_addc_u32 s21, s41, 0'); e('    s_and_b32 s21, s21, 0xffff'); e(f'    s_mov_b32 s22, {P_BYTES}'); e('    s_mov_b32 s23, 0x20000')
    if mode == 1:
        e('    s_cmp_ge_u32 s2, 224')
        e(f'    s_cbranch_scc1 {name}_pfdown')
    e('    v_and_b32 v2, 3, v2')
    e('    v_lshrrev_b32 v3, 3, v1                ; l>>3')
    e('    v_lshl_add_u32 v3, v2, 4, v3           ; r0 = 16w + (l>>3)')
    e('    v_and_b32 v4, 7, v1                    ; pos')
    e('    v_lshrrev_b32 v5, 4, v1                ; l>>4')
    e('    v_xor_b32 v6, v4, v5                   ; c (h=0)')
    e('    v_xor_b32 v7, 4, v6                    ; c (h=1)')
    e('    s_lshl_b32 s48, s45, 6                 ; m0')
    e('    v_add_u32 v8, s48, v3')
    e(f'    s_mov_b32 s49, {pitchA}')
    e('    v_mul_lo_u32 v8, v8, s49')
    e(f'    v_add_u32 v9, {8*pitchA}, v8')
    e('    v_lshl_add_u32 v8, v6, 4, v8           ; A voff h=0')
    e('    v_lshl_add_u32 v9, v7, 4, v9           ; A voff h=1')
    e('    v_lshrrev_b32 v10, 1, v4')
    e('    v_and_b32 v11, 2, v3')
    e('    v_xor_b32 v10, v10, v11                ; nb')
    e('    v_lshlrev_b32 v10, 5, v10')
    e('    v_and_b32 v11, 1, v4')
    e('    v_lshl_add_u32 v10, v11, 4, v10')
    e(f'    s_mov_b32 s49, {pitchW}')
    e('    v_mul_lo_u32 v11, v3, s49')
    e('    v_add_u32 v10, v10, v11')
    e('    s_lshl_b32 s48, s46, 7                 ; nblk*128')
    e('    v_add_u32 v10, s48, v10                ; W voff h=0')
    e(f'    v_add_u32 v11, {8*pitchW}, v10         ; W voff h=1')
    if mode == 1:
        e('    s_mov_b32 s24, 0'); e('    s_mov_b32 s25, 0')
    else:
        e(f'    s_mul_i32 s24, s47, {896*2}')
        e(f'    s_mul_i32 s25, s47, {896*pitchW}')
    e('    s_and_b32 s26, s42, 3')
    e('    s_lshl_b32 s26, s26, 11')
    e('    s_cmp_ge_u32 s42, 4')
    e(f'    s_cbranch_scc1 {name}_loader')
    e('    v_lshrrev_b32 v3, 1, v2                ; wm')
    e('    v_and_b32 v4, 31, v1')
    e('    v_lshl_add_u32 v3, v3, 5, v4')
    e('    v_lshrrev_b32 v4, 1, v3')
    e('    v_and_b32 v4, 7, v4')
    e('    v_lshrrev_b32 v5, 5, v1                ; hi')
    e('    v_xor_b32 v4, v4, v5                   ; hi^s')
    e('    v_lshlrev_b32 v5, 7, v3                ; m*128')
    for kk in range(4):
        e(f'    v_xor_b32 v6, {2*kk}, v4')
        e(f'    v_lshl_add_u32 v{12+kk}, v6, 4, v5')
    e('    v_lshrrev_b32 v3, 4, v1                ; g')
    e('    v_lshrrev_b32 v4, 2, v1')
    e('    v_and_b32 v4, 3, v4                    ; r')
    e('    v_and_b32 v5, 3, v1                    ; c')
    e('    v_and_b32 v6, 1, v2                    ; wn')
    e('    v_and_b32 v7, 1, v3')
    e('    v_lshl_add_u32 v6, v6, 1, v7           ; nb')
    e('    v_and_b32 v7, 2, v4')
    e('    v_xor_b32 v6, v6, v7')
    e('    v_lshrrev_b32 v3, 1, v3')
    e('    v_lshl_add_u32 v3, v3, 3, v4           ; krow')
    e('    v_lshlrev_b32 v3, 7, v3')
    e('    v_lshl_add_u32 v3, v6, 5, v3')
    e('    v_lshl_add_u32 v16, v5, 3, v3')
    e('    v_add_u32 v16, 8192, v16')
    ACC = 72
    for i in range(16*NB):
        e(f'    v_mov_b32 v{ACC+i}, 0')
    RB = 32
    def gload(stage):
        rb = RB + (stage % D)*4*LPS
        for h in range(2):
            e(f'    buffer_load_dwordx4 v[{rb+4*h}:{rb+4*h+3}], v{8+h}, s[8:11], s24 offen')
        for b in range(NB):
            for h in range(2):
                r = rb+8+8*b+4*h
                e(f'    buffer_load_dwordx4 v[{r}:{r+3}], v{10+h}, s[{12+4*b}:{15+4*b}], s25 offen')
        e('    s_add_u32 s24, s24, 128')
        e(f'    s_add_u32 s25, s25, {64*pitchW}')
    def lwrite(stage):
        rb = RB + (stage % D)*4*LPS
        buf = (stage % S)*stage_bytes
        for i in range(LPS):
            o = buf + (i//2)*8192 + (i%2)*1024
            if o >= 49152: e(f'    ds_write_b128 v18, v[{rb+4*i}:{rb+4*i+3}] offset:{o-49152}')
            else: e(f'    ds_write_b128 v17, v[{rb+4*i}:{rb+4*i+3}] offset:{o}')
    if DBG:
        e('    s_memtime s[52:53]')
        e('    s_memrealtime s[54:55]')
    FR = 20
    per = 4+4*NB
    def reads(k, kk):
        b0 = FR+per*kk
        off = (k % S)*stage_bytes
        e(f'    ds_read_b128 v[{b0}:{b0+3}], v{12+kk} offset:{off}')
        for b in range(NB):
            for t in range(2):
                e(f'    ds_read_b64_tr_b16 v[{b0+4+4*b+2*t}:{b0+5+4*b+2*t}], v16 offset:{off + 8192*b + kk*2048 + t*512}')
    def mfmas(kk):
        b0 = FR+per*kk
        for b in range(NB):
            e(f'    v_mfma_f32_32x32x16_bf16 v[{ACC+16*b}:{ACC+16*b+15}], v[{b0+4+4*b}:{b0+7+4*b}], v[{b0}:{b0+3}], v[{ACC+16*b}:{ACC+16*b+15}]')
    npr = 1+2*NB
    subs = [(k,kk) for k in range(KS) for kk in range(4)]
    def doread(i):
        if i >= len(subs): return False
        k,kk = subs[i]
        if kk == 0:
            e(f'    ; ---- stage {k}')
            e('    s_barrier')
            if DBG: e(f'    s_memtime s[{60+2*k}:{61+2*k}]')
        reads(k,kk); return True
    doread(0); doread(1)
    for i in range(len(subs)):
        more = doread(i+2)
        rem = 2 if more else (1 if i+1 < len(subs) else 0)
        e(f'    s_waitcnt lgkmcnt({rem*npr})')
        mfmas(subs[i][1])
    e('    s_nop 15')
    e('    s_nop 7')
    e('    v_lshrrev_b32 v3, 1, v2')
    e('    v_and_b32 v4, 31, v1')
    e('    v_lshl_add_u32 v3, v3, 5, v4')
    e('    s_lshl_b32 s48, s45, 6')
    e('    v_add_u32 v3, s48, v3                  ; m')
    e('    v_and_b32 v4, 1, v2')
    e('    v_lshlrev_b32 v4, 5, v4')
    e('    v_lshrrev_b32 v5, 5, v1')
    e('    v_lshl_add_u32 v4, v5, 2, v4')
    e('    s_lshl_b32 s48, s46, 6')
    e('    v_add_u32 v4, s48, v4                  ; n base')
    if mode == 1:
        e('    s_mov_b32 s49, 7168')
        e('    v_mul_lo_u32 v3, v3, s49')
        e('    v_lshl_add_u32 v3, v4, 1, v3')
        e('    s_mov_b32 s49, 0xffff0000')
        e('    s_mov_b32 s50, 0xbfb8aa3b              ; -log2(e)')
        for q in range(4):
            for p in range(2):
                r = 4*q+2*p
                G0, G1, U0, U1 = ACC+r, ACC+r+1, ACC+16+r, ACC+17+r
                e(f'    v_cvt_pk_bf16_f32 v20, v{G0}, v{G1}')
                e(f'    v_cvt_pk_bf16_f32 v21, v{U0}, v{U1}')
                e('    v_lshlrev_b32 v22, 16, v20             ; g0')
                e('    v_and_b32 v23, s49, v20                ; g1')
                e('    v_lshlrev_b32 v24, 16, v21             ; u0')
                e('    v_and_b32 v25, s49, v21                ; u1')
                e('    v_mul_f32 v26, s50, v22')
                e('    v_mul_f32 v27, s50, v23')
                e('    v_exp_f32 v26, v26')
                e('    v_exp_f32 v27, v27')
                e('    s_nop 0')
                e('    v_add_f32 v26, 1.0, v26')
                e('    v_add_f32 v27, 1.0, v27')
                e('    v_rcp_f32 v26, v26')
                e('    v_rcp_f32 v27, v27')
                e('    s_nop 0')
                e('    v_mul_f32 v26, v22, v26')
                e('    v_mul_f32 v27, v23, v27')
                e('    v_cvt_pk_bf16_f32 v28, v26, v27')
                e('    v_lshlrev_b32 v26, 16, v28')
                e('    v_and_b32 v27, s49, v28')
                e('    v_mul_f32 v26, v26, v24')
                e('    v_mul_f32 v27, v27, v25')
                e(f'    v_cvt_pk_bf16_f32 v{30+2*(q&1)+p}, v26, v27')
            e(f'    buffer_store_dwordx2 v[{30+2*(q&1)}:{31+2*(q&1)}], v3, s[20:23], 0 offen offset:{16*q}')
    else:
        e('    v_lshlrev_b32 v3, 12, v3               ; m*4096')
        e('    v_lshl_add_u32 v3, v4, 2, v3')
        e(f'    s_mul_i32 s48, s47, {256*1024*4}')
        e('    v_add_u32 v3, s48, v3')
        for q in range(4):
            e(f'    buffer_store_dwordx4 v[{ACC+4*q}:{ACC+4*q+3}], v3, s[20:23], 0 offen offset:{32*q}')
    e('    s_waitcnt vmcnt(0)')
    if DBG:
        e('    s_memtime s[56:57]')
        e('    s_memrealtime s[58:59]')
        e('    s_waitcnt lgkmcnt(0)')
        e('    s_cmp_lg_u32 s2, 0')
        e(f'    s_cbranch_scc1 {name}_done')
        e('    s_cmp_lg_u32 s42, 0')
        e(f'    s_cbranch_scc1 {name}_done')
        e('    s_mov_b32 s8, s38'); e('    s_and_b32 s9, s39, 0xffff'); e('    s_mov_b32 s10, 256'); e('    s_mov_b32 s11, 0x20000')
        e('    v_mov_b32 v3, 0')
        e('    s_sub_u32 s56, s56, s52')
        e('    s_sub_u32 s58, s58, s54')
        e('    v_mov_b32 v4, s56'); e('    buffer_store_dword v4, v3, s[8:11], 0 offen offset:0')
        e('    v_mov_b32 v4, s58'); e('    buffer_store_dword v4, v3, s[8:11], 0 offen offset:4')
        for k in range(KS):
            e(f'    s_sub_u32 s{60+2*k}, s{60+2*k}, s52')
            e(f'    v_mov_b32 v4, s{60+2*k}'); e(f'    buffer_store_dword v4, v3, s[8:11], 0 offen offset:{8+4*k + (0 if mode==1 else 128)}')
        e('    s_waitcnt vmcnt(0)')
    e('    s_endpgm')
    e(f'{name}_loader:')
    e('    v_lshlrev_b32 v17, 4, v1')
    e('    v_add_u32 v17, s26, v17')
    e('    v_add_u32 v18, 49152, v17')
    nissued = 0
    for j in range(KS):
        tgt = min(KS, j+D, 3+2*j)
        while nissued < tgt:
            gload(nissued); nissued += 1
        e(f'    s_waitcnt vmcnt({(nissued-(j+1))*LPS})')
        lwrite(j)
        e('    s_waitcnt lgkmcnt(0)')
        e('    s_barrier')
    e('    s_endpgm')
    if mode == 1:
        e(f'{name}_pfdown:')
        e('    s_cmp_ge_u32 s42, 4')
        e(f'    s_cbranch_scc1 {name}_done')
        e('    s_mov_b32 s8, s34'); e('    s_and_b32 s9, s35, 0xffff'); e(f'    s_mov_b32 s10, {1024*3584*2}'); e('    s_mov_b32 s11, 0x20000')
        e('    s_sub_u32 s48, s2, 224')
        e('    s_lshl_b32 s48, s48, 2')
        e('    s_add_u32 s48, s48, s42')
        e(f'    s_mul_i32 s48, s48, {28*2048}')
        e('    v_lshlrev_b32 v3, 7, v1')
        e('    v_add_u32 v3, s48, v3')
        e('    s_mov_b32 s24, 0')
        for i in range(7):
            e('    buffer_load_dword v5, v3, s[8:11], s24 offen')
            e('    s_add_u32 s24, s24, 8192')
    e(f'{name}_done:')
    e('    s_endpgm')

def reduce_kernel(name):
    e(f'.globl {name}')
    e('.p2align 8')
    e(f'.type {name},@function')
    e(f'{name}:')
    e('    s_cmp_ge_u32 s2, 256')
    e(f'    s_cbranch_scc1 {name}_done')
    e('    s_load_dwordx2 s[36:37], s[0:1], 32    ; out')
    e('    s_load_dwordx2 s[40:41], s[0:1], 48    ; ws')
    e('    s_lshl_b32 s3, s2, 8')
    e('    v_add_u32 v1, s3, v0')
    e('    v_lshlrev_b32 v2, 4, v1')
    e('    v_lshlrev_b32 v3, 3, v1')
    e('    s_waitcnt lgkmcnt(0)')
    e(f'    s_add_u32 s8, s40, {WS_P_OFF}'); e('    s_addc_u32 s9, s41, 0'); e('    s_and_b32 s9, s9, 0xffff'); e(f'    s_mov_b32 s10, {P_BYTES}'); e('    s_mov_b32 s11, 0x20000')
    e('    s_mov_b32 s12, s36'); e('    s_and_b32 s13, s37, 0xffff'); e(f'    s_mov_b32 s14, {256*1024*2}'); e('    s_mov_b32 s15, 0x20000')
    for s in range(4):
        e(f'    s_mov_b32 s16, {s*256*1024*4}')
        e(f'    buffer_load_dwordx4 v[{4+4*s}:{7+4*s}], v2, s[8:11], s16 offen')
    e('    s_waitcnt vmcnt(2)')
    for i in range(4): e(f'    v_add_f32 v{4+i}, v{4+i}, v{8+i}')
    e('    s_waitcnt vmcnt(1)')
    for i in range(4): e(f'    v_add_f32 v{4+i}, v{4+i}, v{12+i}')
    e('    s_waitcnt vmcnt(0)')
    for i in range(4): e(f'    v_add_f32 v{4+i}, v{4+i}, v{16+i}')
    e('    v_cvt_pk_bf16_f32 v20, v4, v5')
    e('    v_cvt_pk_bf16_f32 v21, v6, v7')
    e('    buffer_store_dwordx2 v[20:21], v3, s[12:15], 0 offen')
    e('    s_waitcnt vmcnt(0)')
    e(f'{name}_done:')
    e('    s_endpgm')

def kd(name, vgpr):
    e(f'.amdhsa_kernel {name}')
    e(f'  .amdhsa_next_free_vgpr {vgpr}')
    e('  .amdhsa_next_free_sgpr 102')
    e(f'  .amdhsa_accum_offset {(vgpr+3)//4*4}')
    e('  .amdhsa_group_segment_fixed_size 0')
    e('  .amdhsa_kernarg_size 56')
    e('  .amdhsa_user_sgpr_count 2')
    e('  .amdhsa_user_sgpr_kernarg_segment_ptr 1')
    e('  .amdhsa_system_sgpr_workgroup_id_x 1')
    e('.end_amdhsa_kernel')

K1 = 'standalone__swiglu_ffn__sampling_kernel'
K2 = 'ffn_down_kernel'
K3 = 'ffn_reduce_kernel'
S1, S2 = 3, 3
e(HEADER.rstrip('\n'))
e(f'; @launch kernel={K1} grid=(256,1,1) block=(512,1,1) lds={S1*24576}')
e(f'; @launch kernel={K2} grid=(256,1,1) block=(512,1,1) lds={S2*16384}')
e(f'; @launch kernel={K3} grid=(256,1,1) block=(256,1,1) lds=0')
e('.amdgcn_target "amdgcn-amd-amdhsa--gfx950"')
e('.text')
gemm_kernel(K1, 2, 16, S1, 2048, 7168, 1, 9)
gemm_kernel(K2, 1, 14, S2, 7168, 2048, 2, 14)
reduce_kernel(K3)
e('.section .rodata,"a"')
e('.p2align 6')
kd(K1, 256); e(".p2align 6"); kd(K2, 256); e('.p2align 6'); kd(K3, 24)
open(sys.argv[1] if len(sys.argv) > 1 else 'standalone__swiglu_ffn__sampling.s', 'w').write('\n'.join(L)+'\n')
```

```python
import sys
DBG = len(sys.argv) > 2

HEADER = open('standalone__swiglu_ffn__sampling.s.ref').read().split('; Override launch geometry')[0]

L = []
def e(s=''): L.append(s)

WS_H_OFF = 0
WS_P_OFF = 2*1024*1024
H_BYTES = 256*3584*2
P_BYTES = 4*256*1024*4

def gemm_kernel(name, NB, KS, S, pitchA, pitchW, mode, D):
    stage_bytes = 8192*(1+NB)
    LPS = 2*(1+NB)
    e(f'.globl {name}')
    e('.p2align 8')
    e(f'.type {name},@function')
    e(f'{name}:')
    nwg = 256
    e(f'    s_cmp_ge_u32 s2, {nwg}')
    e(f'    s_cbranch_scc1 {name}_done')
    e('    s_load_dwordx4 s[28:31], s[0:1], 0     ; x, w_gate')
    e('    s_load_dwordx4 s[32:35], s[0:1], 16')
    e('    s_load_dwordx4 s[36:39], s[0:1], 32')
    e('    s_load_dwordx2 s[40:41], s[0:1], 48    ; ws')
    e('    v_and_b32 v1, 63, v0                   ; lane')
    e('    v_lshrrev_b32 v2, 6, v0                ; wave')
    e('    s_nop 0')
    e('    v_readfirstlane_b32 s42, v2')
    e('    s_and_b32 s43, s2, 7                   ; xcd-group')
    e('    s_lshr_b32 s44, s2, 3                  ; j')
    e('    s_and_b32 s45, s44, 3                  ; mblk')
    e('    s_lshr_b32 s46, s44, 2                 ; j>>2')
    if mode == 1:
        e('    s_lshl_b32 s46, s46, 3')
        e('    s_add_u32 s46, s46, s43')
    else:
        e('    s_and_b32 s47, s43, 1')
        e('    s_lshl_b32 s47, s47, 3')
        e('    s_add_u32 s46, s46, s47')
        e('    s_lshr_b32 s47, s43, 1                 ; split')
    e('    s_waitcnt lgkmcnt(0)')
    if mode == 1:
        e('    s_mov_b32 s8, s28'); e('    s_and_b32 s9, s29, 0xffff'); e(f'    s_mov_b32 s10, {256*1024*2}'); e('    s_mov_b32 s11, 0x20000')
        e('    s_mov_b32 s12, s30'); e('    s_and_b32 s13, s31, 0xffff'); e(f'    s_mov_b32 s14, {1024*3584*2}'); e('    s_mov_b32 s15, 0x20000')
        e('    s_mov_b32 s16, s32'); e('    s_and_b32 s17, s33, 0xffff'); e(f'    s_mov_b32 s18, {1024*3584*2}'); e('    s_mov_b32 s19, 0x20000')
        e(f'    s_add_u32 s20, s40, {WS_H_OFF}'); e('    s_addc_u32 s21, s41, 0'); e('    s_and_b32 s21, s21, 0xffff'); e(f'    s_mov_b32 s22, {H_BYTES}'); e('    s_mov_b32 s23, 0x20000')
    else:
        e(f'    s_add_u32 s8, s40, {WS_H_OFF}'); e('    s_addc_u32 s9, s41, 0'); e('    s_and_b32 s9, s9, 0xffff'); e(f'    s_mov_b32 s10, {H_BYTES}'); e('    s_mov_b32 s11, 0x20000')
        e('    s_mov_b32 s12, s34'); e('    s_and_b32 s13, s35, 0xffff'); e(f'    s_mov_b32 s14, {1024*3584*2}'); e('    s_mov_b32 s15, 0x20000')
        e(f'    s_add_u32 s20, s40, {WS_P_OFF}'); e('    s_addc_u32 s21, s41, 0'); e('    s_and_b32 s21, s21, 0xffff'); e(f'    s_mov_b32 s22, {P_BYTES}'); e('    s_mov_b32 s23, 0x20000')
    if mode == 1:
        e('    s_cmp_ge_u32 s2, 224')
        e(f'    s_cbranch_scc1 {name}_pfdown')
    e('    v_and_b32 v2, 3, v2')
    e('    v_lshrrev_b32 v3, 3, v1                ; l>>3')
    e('    v_lshl_add_u32 v3, v2, 4, v3           ; r0 = 16w + (l>>3)')
    e('    v_and_b32 v4, 7, v1                    ; pos')
    e('    v_lshrrev_b32 v5, 4, v1                ; l>>4')
    e('    v_xor_b32 v6, v4, v5                   ; c (h=0)')
    e('    v_xor_b32 v7, 4, v6                    ; c (h=1)')
    e('    s_lshl_b32 s48, s45, 6                 ; m0')
    e('    v_add_u32 v8, s48, v3')
    e(f'    s_mov_b32 s49, {pitchA}')
    e('    v_mul_lo_u32 v8, v8, s49')
    e(f'    v_add_u32 v9, {8*pitchA}, v8')
    e('    v_lshl_add_u32 v8, v6, 4, v8           ; A voff h=0')
    e('    v_lshl_add_u32 v9, v7, 4, v9           ; A voff h=1')
    e('    v_lshrrev_b32 v10, 1, v4')
    e('    v_and_b32 v11, 2, v3')
    e('    v_xor_b32 v10, v10, v11                ; nb')
    e('    v_lshlrev_b32 v10, 5, v10')
    e('    v_and_b32 v11, 1, v4')
    e('    v_lshl_add_u32 v10, v11, 4, v10')
    e(f'    s_mov_b32 s49, {pitchW}')
    e('    v_mul_lo_u32 v11, v3, s49')
    e('    v_add_u32 v10, v10, v11')
    e('    s_lshl_b32 s48, s46, 7                 ; nblk*128')
    e('    v_add_u32 v10, s48, v10                ; W voff h=0')
    e(f'    v_add_u32 v11, {8*pitchW}, v10         ; W voff h=1')
    if mode == 1:
        e('    s_mov_b32 s24, 0'); e('    s_mov_b32 s25, 0')
    else:
        e(f'    s_mul_i32 s24, s47, {896*2}')
        e(f'    s_mul_i32 s25, s47, {896*pitchW}')
    e('    s_and_b32 s26, s42, 3')
    e('    s_lshl_b32 s26, s26, 11')
    e('    s_cmp_ge_u32 s42, 4')
    e(f'    s_cbranch_scc1 {name}_loader')
    e('    v_lshrrev_b32 v3, 1, v2                ; wm')
    e('    v_and_b32 v4, 31, v1')
    e('    v_lshl_add_u32 v3, v3, 5, v4')
    e('    v_lshrrev_b32 v4, 1, v3')
    e('    v_and_b32 v4, 7, v4')
    e('    v_lshrrev_b32 v5, 5, v1                ; hi')
    e('    v_xor_b32 v4, v4, v5                   ; hi^s')
    e('    v_lshlrev_b32 v5, 7, v3                ; m*128')
    for kk in range(4):
        e(f'    v_xor_b32 v6, {2*kk}, v4')
        e(f'    v_lshl_add_u32 v{12+kk}, v6, 4, v5')
    e('    v_lshrrev_b32 v3, 4, v1                ; g')
    e('    v_lshrrev_b32 v4, 2, v1')
    e('    v_and_b32 v4, 3, v4                    ; r')
    e('    v_and_b32 v5, 3, v1                    ; c')
    e('    v_and_b32 v6, 1, v2                    ; wn')
    e('    v_and_b32 v7, 1, v3')
    e('    v_lshl_add_u32 v6, v6, 1, v7           ; nb')
    e('    v_and_b32 v7, 2, v4')
    e('    v_xor_b32 v6, v6, v7')
    e('    v_lshrrev_b32 v3, 1, v3')
    e('    v_lshl_add_u32 v3, v3, 3, v4           ; krow')
    e('    v_lshlrev_b32 v3, 7, v3')
    e('    v_lshl_add_u32 v3, v6, 5, v3')
    e('    v_lshl_add_u32 v16, v5, 3, v3')
    e('    v_add_u32 v16, 8192, v16')
    ACC = 72
    for i in range(16*NB):
        e(f'    v_mov_b32 v{ACC+i}, 0')
    RB = 32
    def gload(stage):
        rb = RB + (stage % D)*4*LPS
        for h in range(2):
            e(f'    buffer_load_dwordx4 v[{rb+4*h}:{rb+4*h+3}], v{8+h}, s[8:11], s24 offen')
        for b in range(NB):
            for h in range(2):
                r = rb+8+8*b+4*h
                e(f'    buffer_load_dwordx4 v[{r}:{r+3}], v{10+h}, s[{12+4*b}:{15+4*b}], s25 offen')
        e('    s_add_u32 s24, s24, 128')
        e(f'    s_add_u32 s25, s25, {64*pitchW}')
    def lwrite(stage):
        rb = RB + (stage % D)*4*LPS
        buf = (stage % S)*stage_bytes
        for i in range(LPS):
            o = buf + (i//2)*8192 + (i%2)*1024
            if o >= 49152: e(f'    ds_write_b128 v18, v[{rb+4*i}:{rb+4*i+3}] offset:{o-49152}')
            else: e(f'    ds_write_b128 v17, v[{rb+4*i}:{rb+4*i+3}] offset:{o}')
    if DBG:
        e('    s_memtime s[52:53]')
        e('    s_memrealtime s[54:55]')
    FR = 20
    per = 4+4*NB
    def reads(k, kk):
        b0 = FR+per*kk
        off = (k % S)*stage_bytes
        e(f'    ds_read_b128 v[{b0}:{b0+3}], v{12+kk} offset:{off}')
        for b in range(NB):
            for t in range(2):
                e(f'    ds_read_b64_tr_b16 v[{b0+4+4*b+2*t}:{b0+5+4*b+2*t}], v16 offset:{off + 8192*b + kk*2048 + t*512}')
    def mfmas(kk):
        b0 = FR+per*kk
        for b in range(NB):
            e(f'    v_mfma_f32_32x32x16_bf16 v[{ACC+16*b}:{ACC+16*b+15}], v[{b0+4+4*b}:{b0+7+4*b}], v[{b0}:{b0+3}], v[{ACC+16*b}:{ACC+16*b+15}]')
    npr = 1+2*NB
    subs = [(k,kk) for k in range(KS) for kk in range(4)]
    def doread(i):
        if i >= len(subs): return False
        k,kk = subs[i]
        if kk == 0:
            e(f'    ; ---- stage {k}')
            e('    s_barrier')
            if DBG: e(f'    s_memtime s[{60+2*k}:{61+2*k}]')
        reads(k,kk); return True
    doread(0); doread(1)
    for i in range(len(subs)):
        more = doread(i+2)
        rem = 2 if more else (1 if i+1 < len(subs) else 0)
        e(f'    s_waitcnt lgkmcnt({rem*npr})')
        mfmas(subs[i][1])
    e('    s_nop 15')
    e('    s_nop 7')
    e('    v_lshrrev_b32 v3, 1, v2')
    e('    v_and_b32 v4, 31, v1')
    e('    v_lshl_add_u32 v3, v3, 5, v4')
    e('    s_lshl_b32 s48, s45, 6')
    e('    v_add_u32 v3, s48, v3                  ; m')
    e('    v_and_b32 v4, 1, v2')
    e('    v_lshlrev_b32 v4, 5, v4')
    e('    v_lshrrev_b32 v5, 5, v1')
    e('    v_lshl_add_u32 v4, v5, 2, v4')
    e('    s_lshl_b32 s48, s46, 6')
    e('    v_add_u32 v4, s48, v4                  ; n base')
    if mode == 1:
        e('    s_mov_b32 s49, 7168')
        e('    v_mul_lo_u32 v3, v3, s49')
        e('    v_lshl_add_u32 v3, v4, 1, v3')
        e('    s_mov_b32 s49, 0xffff0000')
        e('    s_mov_b32 s50, 0xbfb8aa3b              ; -log2(e)')
        for q in range(4):
            for p in range(2):
                r = 4*q+2*p
                G0, G1, U0, U1 = ACC+r, ACC+r+1, ACC+16+r, ACC+17+r
                e(f'    v_cvt_pk_bf16_f32 v20, v{G0}, v{G1}')
                e(f'    v_cvt_pk_bf16_f32 v21, v{U0}, v{U1}')
                e('    v_lshlrev_b32 v22, 16, v20             ; g0')
                e('    v_and_b32 v23, s49, v20                ; g1')
                e('    v_lshlrev_b32 v24, 16, v21             ; u0')
                e('    v_and_b32 v25, s49, v21                ; u1')
                e('    v_mul_f32 v26, s50, v22')
                e('    v_mul_f32 v27, s50, v23')
                e('    v_exp_f32 v26, v26')
                e('    v_exp_f32 v27, v27')
                e('    s_nop 0')
                e('    v_add_f32 v26, 1.0, v26')
                e('    v_add_f32 v27, 1.0, v27')
                e('    v_rcp_f32 v26, v26')
                e('    v_rcp_f32 v27, v27')
                e('    s_nop 0')
                e('    v_mul_f32 v26, v22, v26')
                e('    v_mul_f32 v27, v23, v27')
                e('    v_cvt_pk_bf16_f32 v28, v26, v27')
                e('    v_lshlrev_b32 v26, 16, v28')
                e('    v_and_b32 v27, s49, v28')
                e('    v_mul_f32 v26, v26, v24')
                e('    v_mul_f32 v27, v27, v25')
                e(f'    v_cvt_pk_bf16_f32 v{30+2*(q&1)+p}, v26, v27')
            e(f'    buffer_store_dwordx2 v[{30+2*(q&1)}:{31+2*(q&1)}], v3, s[20:23], 0 offen offset:{16*q}')
    else:
        e('    v_lshlrev_b32 v5, 11, v3               ; m*2048')
        e('    v_lshl_add_u32 v5, v4, 1, v5')
        e('    v_lshlrev_b32 v3, 12, v3               ; m*4096')
        e('    v_lshl_add_u32 v3, v4, 2, v3')
        e(f'    s_mul_i32 s48, s47, {256*1024*4}')
        for q in range(4):
            e(f'    buffer_store_dwordx4 v[{ACC+4*q}:{ACC+4*q+3}], v3, s[20:23], s48 offen offset:{32*q} sc1')
        e('    s_waitcnt vmcnt(0)')
        e('    s_barrier')
        e('    s_mov_b32 s8, s38'); e('    s_and_b32 s9, s39, 0xffff'); e('    s_mov_b32 s10, 256'); e('    s_mov_b32 s11, 0x20000')
        e('    s_lshl_b32 s48, s45, 4')
        e('    s_add_u32 s48, s48, s46')
        e('    s_lshl_b32 s48, s48, 2                 ; tile*4')
        e('    s_cmp_lg_u32 s42, 0')
        e(f'    s_cbranch_scc1 {name}_wait')
        e('    v_mov_b32 v6, 0')
        e('    v_mov_b32 v7, 1')
        e('    v_cmp_eq_u32 vcc, 0, v1')
        e('    s_and_saveexec_b64 s[50:51], vcc')
        e('    buffer_atomic_add v7, v6, s[8:11], s48 offen sc0 sc1')
        e('    s_waitcnt vmcnt(0)')
        e('    ds_write_b32 v6, v7')
        e('    s_waitcnt lgkmcnt(0)')
        e('    s_mov_b64 exec, s[50:51]')
        e(f'{name}_wait:')
        e('    s_barrier')
        e('    v_mov_b32 v6, 0')
        e('    ds_read_b32 v7, v6')
        e('    s_waitcnt lgkmcnt(0)')
        e('    v_readfirstlane_b32 s48, v7')
        e('    s_cmp_lg_u32 s48, 3')
        e(f'    s_cbranch_scc1 {name}_done')
        e('    s_mov_b32 s12, s36'); e('    s_and_b32 s13, s37, 0xffff'); e(f'    s_mov_b32 s14, {256*1024*2}'); e('    s_mov_b32 s15, 0x20000')
        for sp in range(4):
            e(f'    s_mov_b32 s48, {sp*256*1024*4}')
            for q in range(4):
                e(f'    buffer_load_dwordx4 v[{100+16*sp+4*q}:{103+16*sp+4*q}], v3, s[20:23], s48 offen offset:{32*q} sc1')
        for q in range(4):
            e(f'    s_waitcnt vmcnt({3-q})')
            for i in range(4):
                r = 100+4*q+i
                e(f'    v_add_f32 v{r}, v{r}, v{r+16}')
                e(f'    v_add_f32 v{r}, v{r}, v{r+32}')
                e(f'    v_add_f32 v{r}, v{r}, v{r+48}')
            e(f'    v_cvt_pk_bf16_f32 v{20+2*q}, v{100+4*q}, v{101+4*q}')
            e(f'    v_cvt_pk_bf16_f32 v{21+2*q}, v{102+4*q}, v{103+4*q}')
            e(f'    buffer_store_dwordx2 v[{20+2*q}:{21+2*q}], v5, s[12:15], 0 offen offset:{16*q}')
    e('    s_waitcnt vmcnt(0)')
    if DBG:
        e('    s_memtime s[56:57]')
        e('    s_memrealtime s[58:59]')
        e('    s_waitcnt lgkmcnt(0)')
        e('    s_cmp_lg_u32 s2, 0')
        e(f'    s_cbranch_scc1 {name}_done')
        e('    s_cmp_lg_u32 s42, 0')
        e(f'    s_cbranch_scc1 {name}_done')
        e('    s_mov_b32 s8, s38'); e('    s_and_b32 s9, s39, 0xffff'); e('    s_mov_b32 s10, 256'); e('    s_mov_b32 s11, 0x20000')
        e('    v_mov_b32 v3, 0')
        e('    s_sub_u32 s56, s56, s52')
        e('    s_sub_u32 s58, s58, s54')
        e('    v_mov_b32 v4, s56'); e('    buffer_store_dword v4, v3, s[8:11], 0 offen offset:0')
        e('    v_mov_b32 v4, s58'); e('    buffer_store_dword v4, v3, s[8:11], 0 offen offset:4')
        for k in range(KS):
            e(f'    s_sub_u32 s{60+2*k}, s{60+2*k}, s52')
            e(f'    v_mov_b32 v4, s{60+2*k}'); e(f'    buffer_store_dword v4, v3, s[8:11], 0 offen offset:{8+4*k + (0 if mode==1 else 128)}')
        e('    s_waitcnt vmcnt(0)')
    e('    s_endpgm')
    e(f'{name}_loader:')
    e('    v_lshlrev_b32 v17, 4, v1')
    e('    v_add_u32 v17, s26, v17')
    e('    v_add_u32 v18, 49152, v17')
    nissued = 0
    for j in range(KS):
        tgt = min(KS, j+D, 3+2*j)
        while nissued < tgt:
            gload(nissued); nissued += 1
        e(f'    s_waitcnt vmcnt({(nissued-(j+1))*LPS})')
        lwrite(j)
        e('    s_waitcnt lgkmcnt(0)')
        e('    s_barrier')
    e('    s_endpgm')
    if mode == 1:
        e(f'{name}_pfdown:')
        e('    s_cmp_ge_u32 s42, 4')
        e(f'    s_cbranch_scc1 {name}_done')
        e('    s_mov_b32 s8, s34'); e('    s_and_b32 s9, s35, 0xffff'); e(f'    s_mov_b32 s10, {1024*3584*2}'); e('    s_mov_b32 s11, 0x20000')
        e('    s_sub_u32 s48, s2, 224')
        e('    s_lshl_b32 s48, s48, 2')
        e('    s_add_u32 s48, s48, s42')
        e(f'    s_mul_i32 s48, s48, {28*2048}')
        e('    v_lshlrev_b32 v3, 7, v1')
        e('    v_add_u32 v3, s48, v3')
        e('    s_mov_b32 s24, 0')
        for i in range(7):
            e('    buffer_load_dword v5, v3, s[8:11], s24 offen')
            e('    s_add_u32 s24, s24, 8192')
    e(f'{name}_done:')
    e('    s_endpgm')

def reduce_kernel(name):
    e(f'.globl {name}')
    e('.p2align 8')
    e(f'.type {name},@function')
    e(f'{name}:')
    e('    s_cmp_ge_u32 s2, 256')
    e(f'    s_cbranch_scc1 {name}_done')
    e('    s_load_dwordx2 s[36:37], s[0:1], 32    ; out')
    e('    s_load_dwordx2 s[40:41], s[0:1], 48    ; ws')
    e('    s_lshl_b32 s3, s2, 8')
    e('    v_add_u32 v1, s3, v0')
    e('    v_lshlrev_b32 v2, 4, v1')
    e('    v_lshlrev_b32 v3, 3, v1')
    e('    s_waitcnt lgkmcnt(0)')
    e(f'    s_add_u32 s8, s40, {WS_P_OFF}'); e('    s_addc_u32 s9, s41, 0'); e('    s_and_b32 s9, s9, 0xffff'); e(f'    s_mov_b32 s10, {P_BYTES}'); e('    s_mov_b32 s11, 0x20000')
    e('    s_mov_b32 s12, s36'); e('    s_and_b32 s13, s37, 0xffff'); e(f'    s_mov_b32 s14, {256*1024*2}'); e('    s_mov_b32 s15, 0x20000')
    for s in range(4):
        e(f'    s_mov_b32 s16, {s*256*1024*4}')
        e(f'    buffer_load_dwordx4 v[{4+4*s}:{7+4*s}], v2, s[8:11], s16 offen')
    e('    s_waitcnt vmcnt(2)')
    for i in range(4): e(f'    v_add_f32 v{4+i}, v{4+i}, v{8+i}')
    e('    s_waitcnt vmcnt(1)')
    for i in range(4): e(f'    v_add_f32 v{4+i}, v{4+i}, v{12+i}')
    e('    s_waitcnt vmcnt(0)')
    for i in range(4): e(f'    v_add_f32 v{4+i}, v{4+i}, v{16+i}')
    e('    v_cvt_pk_bf16_f32 v20, v4, v5')
    e('    v_cvt_pk_bf16_f32 v21, v6, v7')
    e('    buffer_store_dwordx2 v[20:21], v3, s[12:15], 0 offen')
    e('    s_waitcnt vmcnt(0)')
    e(f'{name}_done:')
    e('    s_endpgm')

def kd(name, vgpr):
    e(f'.amdhsa_kernel {name}')
    e(f'  .amdhsa_next_free_vgpr {vgpr}')
    e('  .amdhsa_next_free_sgpr 102')
    e(f'  .amdhsa_accum_offset {(vgpr+3)//4*4}')
    e('  .amdhsa_group_segment_fixed_size 0')
    e('  .amdhsa_kernarg_size 56')
    e('  .amdhsa_user_sgpr_count 2')
    e('  .amdhsa_user_sgpr_kernarg_segment_ptr 1')
    e('  .amdhsa_system_sgpr_workgroup_id_x 1')
    e('.end_amdhsa_kernel')

K1 = 'standalone__swiglu_ffn__sampling_kernel'
K2 = 'ffn_down_kernel'
K3 = 'ffn_reduce_kernel'
S1, S2 = 3, 3
e(HEADER.rstrip('\n'))
e(f'; @launch kernel={K1} grid=(256,1,1) block=(512,1,1) lds={S1*24576}')
e(f'; @launch kernel={K2} grid=(256,1,1) block=(512,1,1) lds={S2*16384}')
e('.amdgcn_target "amdgcn-amd-amdhsa--gfx950"')
e('.text')
gemm_kernel(K1, 2, 16, S1, 2048, 7168, 1, 9)
gemm_kernel(K2, 1, 14, S2, 7168, 2048, 2, 14)
e('.section .rodata,"a"')
e('.p2align 6')
kd(K1, 256); e(".p2align 6"); kd(K2, 256)
open(sys.argv[1] if len(sys.argv) > 1 else 'standalone__swiglu_ffn__sampling.s', 'w').write('\n'.join(L)+'\n')
```

```python
import sys
DBG = len(sys.argv) > 2

HEADER = open('standalone__swiglu_ffn__sampling.s.ref').read().split('; Override launch geometry')[0]

L = []
def e(s=''): L.append(s)

WS_H_OFF = 0
WS_P_OFF = 2*1024*1024
H_BYTES = 256*3584*2
P_BYTES = 4*256*1024*4

def gemm_kernel(name, NB, KS, S, pitchA, pitchW, mode, D):
    stage_bytes = 8192*(1+NB)
    LPS = 2*(1+NB)
    e(f'.globl {name}')
    e('.p2align 8')
    e(f'.type {name},@function')
    e(f'{name}:')
    nwg = 224 if mode == 1 else 256
    e(f'    s_cmp_ge_u32 s2, {nwg}')
    e(f'    s_cbranch_scc1 {name}_done')
    e('    s_load_dwordx4 s[28:31], s[0:1], 0     ; x, w_gate')
    e('    s_load_dwordx4 s[32:35], s[0:1], 16')
    e('    s_load_dwordx4 s[36:39], s[0:1], 32')
    e('    s_load_dwordx2 s[40:41], s[0:1], 48    ; ws')
    e('    v_and_b32 v1, 63, v0                   ; lane')
    e('    v_lshrrev_b32 v2, 6, v0                ; wave')
    e('    s_nop 0')
    e('    v_readfirstlane_b32 s42, v2')
    e('    s_and_b32 s43, s2, 7                   ; xcd-group')
    e('    s_lshr_b32 s44, s2, 3                  ; j')
    e('    s_and_b32 s45, s44, 3                  ; mblk')
    e('    s_lshr_b32 s46, s44, 2                 ; j>>2')
    if mode == 1:
        e('    s_lshl_b32 s46, s46, 3')
        e('    s_add_u32 s46, s46, s43')
    else:
        e('    s_and_b32 s47, s43, 1')
        e('    s_lshl_b32 s47, s47, 3')
        e('    s_add_u32 s46, s46, s47')
        e('    s_lshr_b32 s47, s43, 1                 ; split')
    e('    s_waitcnt lgkmcnt(0)')
    if mode == 1:
        e('    s_mov_b32 s8, s28'); e('    s_and_b32 s9, s29, 0xffff'); e(f'    s_mov_b32 s10, {256*1024*2}'); e('    s_mov_b32 s11, 0x20000')
        e('    s_mov_b32 s12, s30'); e('    s_and_b32 s13, s31, 0xffff'); e(f'    s_mov_b32 s14, {1024*3584*2}'); e('    s_mov_b32 s15, 0x20000')
        e('    s_mov_b32 s16, s32'); e('    s_and_b32 s17, s33, 0xffff'); e(f'    s_mov_b32 s18, {1024*3584*2}'); e('    s_mov_b32 s19, 0x20000')
        e(f'    s_add_u32 s20, s40, {WS_H_OFF}'); e('    s_addc_u32 s21, s41, 0'); e('    s_and_b32 s21, s21, 0xffff'); e(f'    s_mov_b32 s22, {H_BYTES}'); e('    s_mov_b32 s23, 0x20000')
    else:
        e(f'    s_add_u32 s8, s40, {WS_H_OFF}'); e('    s_addc_u32 s9, s41, 0'); e('    s_and_b32 s9, s9, 0xffff'); e(f'    s_mov_b32 s10, {H_BYTES}'); e('    s_mov_b32 s11, 0x20000')
        e('    s_mov_b32 s12, s34'); e('    s_and_b32 s13, s35, 0xffff'); e(f'    s_mov_b32 s14, {1024*3584*2}'); e('    s_mov_b32 s15, 0x20000')
        e(f'    s_add_u32 s20, s40, {WS_P_OFF}'); e('    s_addc_u32 s21, s41, 0'); e('    s_and_b32 s21, s21, 0xffff'); e(f'    s_mov_b32 s22, {P_BYTES}'); e('    s_mov_b32 s23, 0x20000')
    e('    v_and_b32 v2, 3, v2')
    e('    v_lshrrev_b32 v3, 3, v1                ; l>>3')
    e('    v_lshl_add_u32 v3, v2, 4, v3           ; r0 = 16w + (l>>3)')
    e('    v_and_b32 v4, 7, v1                    ; pos')
    e('    v_lshrrev_b32 v5, 4, v1                ; l>>4')
    e('    v_xor_b32 v6, v4, v5                   ; c (h=0)')
    e('    v_xor_b32 v7, 4, v6                    ; c (h=1)')
    e('    s_lshl_b32 s48, s45, 6                 ; m0')
    e('    v_add_u32 v8, s48, v3')
    e(f'    s_mov_b32 s49, {pitchA}')
    e('    v_mul_lo_u32 v8, v8, s49')
    e(f'    v_add_u32 v9, {8*pitchA}, v8')
    e('    v_lshl_add_u32 v8, v6, 4, v8           ; A voff h=0')
    e('    v_lshl_add_u32 v9, v7, 4, v9           ; A voff h=1')
    e('    v_lshrrev_b32 v10, 1, v4')
    e('    v_and_b32 v11, 2, v3')
    e('    v_xor_b32 v10, v10, v11                ; nb')
    e('    v_lshlrev_b32 v10, 5, v10')
    e('    v_and_b32 v11, 1, v4')
    e('    v_lshl_add_u32 v10, v11, 4, v10')
    e(f'    s_mov_b32 s49, {pitchW}')
    e('    v_mul_lo_u32 v11, v3, s49')
    e('    v_add_u32 v10, v10, v11')
    e('    s_lshl_b32 s48, s46, 7                 ; nblk*128')
    e('    v_add_u32 v10, s48, v10                ; W voff h=0')
    e(f'    v_add_u32 v11, {8*pitchW}, v10         ; W voff h=1')
    if mode == 1:
        e('    s_mov_b32 s24, 0'); e('    s_mov_b32 s25, 0')
    else:
        e(f'    s_mul_i32 s24, s47, {896*2}')
        e(f'    s_mul_i32 s25, s47, {896*pitchW}')
    e('    s_and_b32 s26, s42, 3')
    e('    s_lshl_b32 s26, s26, 11')
    e('    s_cmp_ge_u32 s42, 4')
    e(f'    s_cbranch_scc1 {name}_loader')
    e('    v_lshrrev_b32 v3, 1, v2                ; wm')
    e('    v_and_b32 v4, 31, v1')
    e('    v_lshl_add_u32 v3, v3, 5, v4')
    e('    v_lshrrev_b32 v4, 1, v3')
    e('    v_and_b32 v4, 7, v4')
    e('    v_lshrrev_b32 v5, 5, v1                ; hi')
    e('    v_xor_b32 v4, v4, v5                   ; hi^s')
    e('    v_lshlrev_b32 v5, 7, v3                ; m*128')
    for kk in range(4):
        e(f'    v_xor_b32 v6, {2*kk}, v4')
        e(f'    v_lshl_add_u32 v{12+kk}, v6, 4, v5')
    e('    v_lshrrev_b32 v3, 4, v1                ; g')
    e('    v_lshrrev_b32 v4, 2, v1')
    e('    v_and_b32 v4, 3, v4                    ; r')
    e('    v_and_b32 v5, 3, v1                    ; c')
    e('    v_and_b32 v6, 1, v2                    ; wn')
    e('    v_and_b32 v7, 1, v3')
    e('    v_lshl_add_u32 v6, v6, 1, v7           ; nb')
    e('    v_and_b32 v7, 2, v4')
    e('    v_xor_b32 v6, v6, v7')
    e('    v_lshrrev_b32 v3, 1, v3')
    e('    v_lshl_add_u32 v3, v3, 3, v4           ; krow')
    e('    v_lshlrev_b32 v3, 7, v3')
    e('    v_lshl_add_u32 v3, v6, 5, v3')
    e('    v_lshl_add_u32 v16, v5, 3, v3')
    e('    v_add_u32 v16, 8192, v16')
    ACC = 72
    for i in range(16*NB):
        e(f'    v_mov_b32 v{ACC+i}, 0')
    RB = 32
    def gload(stage):
        rb = RB + (stage % D)*4*LPS
        for h in range(2):
            e(f'    buffer_load_dwordx4 v[{rb+4*h}:{rb+4*h+3}], v{8+h}, s[8:11], s24 offen')
        for b in range(NB):
            for h in range(2):
                r = rb+8+8*b+4*h
                e(f'    buffer_load_dwordx4 v[{r}:{r+3}], v{10+h}, s[{12+4*b}:{15+4*b}], s25 offen')
        e('    s_add_u32 s24, s24, 128')
        e(f'    s_add_u32 s25, s25, {64*pitchW}')
    def lwrite(stage):
        rb = RB + (stage % D)*4*LPS
        buf = (stage % S)*stage_bytes
        for i in range(LPS):
            o = buf + (i//2)*8192 + (i%2)*1024
            if o >= 49152: e(f'    ds_write_b128 v18, v[{rb+4*i}:{rb+4*i+3}] offset:{o-49152}')
            else: e(f'    ds_write_b128 v17, v[{rb+4*i}:{rb+4*i+3}] offset:{o}')
    if DBG:
        e('    s_memtime s[52:53]')
        e('    s_memrealtime s[54:55]')
    FR = 20
    per = 4+4*NB
    def reads(k, kk):
        b0 = FR+per*kk
        off = (k % S)*stage_bytes
        e(f'    ds_read_b128 v[{b0}:{b0+3}], v{12+kk} offset:{off}')
        for b in range(NB):
            for t in range(2):
                e(f'    ds_read_b64_tr_b16 v[{b0+4+4*b+2*t}:{b0+5+4*b+2*t}], v16 offset:{off + 8192*b + kk*2048 + t*512}')
    def mfmas(kk):
        b0 = FR+per*kk
        for b in range(NB):
            e(f'    v_mfma_f32_32x32x16_bf16 v[{ACC+16*b}:{ACC+16*b+15}], v[{b0+4+4*b}:{b0+7+4*b}], v[{b0}:{b0+3}], v[{ACC+16*b}:{ACC+16*b+15}]')
    npr = 1+2*NB
    subs = [(k,kk) for k in range(KS) for kk in range(4)]
    def doread(i):
        if i >= len(subs): return False
        k,kk = subs[i]
        if kk == 0:
            e(f'    ; ---- stage {k}')
            e('    s_barrier')
            if DBG: e(f'    s_memtime s[{60+2*k}:{61+2*k}]')
        reads(k,kk); return True
    doread(0); doread(1)
    for i in range(len(subs)):
        more = doread(i+2)
        rem = 2 if more else (1 if i+1 < len(subs) else 0)
        e(f'    s_waitcnt lgkmcnt({rem*npr})')
        mfmas(subs[i][1])
    e('    s_nop 15')
    e('    s_nop 7')
    e('    v_lshrrev_b32 v3, 1, v2')
    e('    v_and_b32 v4, 31, v1')
    e('    v_lshl_add_u32 v3, v3, 5, v4')
    e('    s_lshl_b32 s48, s45, 6')
    e('    v_add_u32 v3, s48, v3                  ; m')
    e('    v_and_b32 v4, 1, v2')
    e('    v_lshlrev_b32 v4, 5, v4')
    e('    v_lshrrev_b32 v5, 5, v1')
    e('    v_lshl_add_u32 v4, v5, 2, v4')
    e('    s_lshl_b32 s48, s46, 6')
    e('    v_add_u32 v4, s48, v4                  ; n base')
    if mode == 1:
        e('    s_mov_b32 s49, 7168')
        e('    v_mul_lo_u32 v3, v3, s49')
        e('    v_lshl_add_u32 v3, v4, 1, v3')
        e('    s_mov_b32 s49, 0xffff0000')
        e('    s_mov_b32 s50, 0xbfb8aa3b              ; -log2(e)')
        for q in range(4):
            for p in range(2):
                r = 4*q+2*p
                G0, G1, U0, U1 = ACC+r, ACC+r+1, ACC+16+r, ACC+17+r
                e(f'    v_cvt_pk_bf16_f32 v20, v{G0}, v{G1}')
                e(f'    v_cvt_pk_bf16_f32 v21, v{U0}, v{U1}')
                e('    v_lshlrev_b32 v22, 16, v20             ; g0')
                e('    v_and_b32 v23, s49, v20                ; g1')
                e('    v_lshlrev_b32 v24, 16, v21             ; u0')
                e('    v_and_b32 v25, s49, v21                ; u1')
                e('    v_mul_f32 v26, s50, v22')
                e('    v_mul_f32 v27, s50, v23')
                e('    v_exp_f32 v26, v26')
                e('    v_exp_f32 v27, v27')
                e('    s_nop 0')
                e('    v_add_f32 v26, 1.0, v26')
                e('    v_add_f32 v27, 1.0, v27')
                e('    v_rcp_f32 v26, v26')
                e('    v_rcp_f32 v27, v27')
                e('    s_nop 0')
                e('    v_mul_f32 v26, v22, v26')
                e('    v_mul_f32 v27, v23, v27')
                e('    v_cvt_pk_bf16_f32 v28, v26, v27')
                e('    v_lshlrev_b32 v26, 16, v28')
                e('    v_and_b32 v27, s49, v28')
                e('    v_mul_f32 v26, v26, v24')
                e('    v_mul_f32 v27, v27, v25')
                e(f'    v_cvt_pk_bf16_f32 v{30+2*(q&1)+p}, v26, v27')
            e(f'    buffer_store_dwordx2 v[{30+2*(q&1)}:{31+2*(q&1)}], v3, s[20:23], 0 offen offset:{16*q}')
    else:
        e('    v_lshlrev_b32 v3, 12, v3               ; m*4096')
        e('    v_lshl_add_u32 v3, v4, 2, v3')
        e(f'    s_mul_i32 s48, s47, {256*1024*4}')
        e('    v_add_u32 v3, s48, v3')
        for q in range(4):
            e(f'    buffer_store_dwordx4 v[{ACC+4*q}:{ACC+4*q+3}], v3, s[20:23], 0 offen offset:{32*q}')
    e('    s_waitcnt vmcnt(0)')
    if DBG:
        e('    s_memtime s[56:57]')
        e('    s_memrealtime s[58:59]')
        e('    s_waitcnt lgkmcnt(0)')
        e('    s_cmp_lg_u32 s2, 0')
        e(f'    s_cbranch_scc1 {name}_done')
        e('    s_cmp_lg_u32 s42, 0')
        e(f'    s_cbranch_scc1 {name}_done')
        e('    s_mov_b32 s8, s38'); e('    s_and_b32 s9, s39, 0xffff'); e('    s_mov_b32 s10, 256'); e('    s_mov_b32 s11, 0x20000')
        e('    v_mov_b32 v3, 0')
        e('    s_sub_u32 s56, s56, s52')
        e('    s_sub_u32 s58, s58, s54')
        e('    v_mov_b32 v4, s56'); e('    buffer_store_dword v4, v3, s[8:11], 0 offen offset:0')
        e('    v_mov_b32 v4, s58'); e('    buffer_store_dword v4, v3, s[8:11], 0 offen offset:4')
        for k in range(KS):
            e(f'    s_sub_u32 s{60+2*k}, s{60+2*k}, s52')
            e(f'    v_mov_b32 v4, s{60+2*k}'); e(f'    buffer_store_dword v4, v3, s[8:11], 0 offen offset:{8+4*k + (0 if mode==1 else 128)}')
        e('    s_waitcnt vmcnt(0)')
    e('    s_endpgm')
    e(f'{name}_loader:')
    e('    v_lshlrev_b32 v17, 4, v1')
    e('    v_add_u32 v17, s26, v17')
    e('    v_add_u32 v18, 49152, v17')
    nissued = 0
    PFX = [0]
    for j in range(KS):
        tgt = min(KS, j+D, 3+2*j)
        while nissued < tgt:
            gload(nissued); nissued += 1
            if mode == 1 and nissued == KS:
                e('    s_mov_b32 s52, s34'); e('    s_and_b32 s53, s35, 0xffff'); e(f'    s_mov_b32 s54, {1024*3584*2}'); e('    s_mov_b32 s55, 0x20000')
                e('    s_lshl_b32 s48, s2, 2')
                e('    s_and_b32 s49, s42, 3')
                e('    s_add_u32 s48, s48, s49')
                e('    s_lshl_b32 s48, s48, 13')
                e('    v_lshlrev_b32 v19, 7, v1')
                e('    buffer_load_dword v19, v19, s[52:55], s48 offen')
                PFX[0] = 1
        e(f'    s_waitcnt vmcnt({(nissued-(j+1))*LPS + PFX[0]})')
        lwrite(j)
        e('    s_waitcnt lgkmcnt(0)')
        e('    s_barrier')
    e('    s_endpgm')
    e(f'{name}_done:')
    e('    s_endpgm')

def reduce_kernel(name):
    e(f'.globl {name}')
    e('.p2align 8')
    e(f'.type {name},@function')
    e(f'{name}:')
    e('    s_cmp_ge_u32 s2, 256')
    e(f'    s_cbranch_scc1 {name}_done')
    e('    s_load_dwordx2 s[36:37], s[0:1], 32    ; out')
    e('    s_load_dwordx2 s[40:41], s[0:1], 48    ; ws')
    e('    s_lshl_b32 s3, s2, 8')
    e('    v_add_u32 v1, s3, v0')
    e('    v_lshlrev_b32 v2, 4, v1')
    e('    v_lshlrev_b32 v3, 3, v1')
    e('    s_waitcnt lgkmcnt(0)')
    e(f'    s_add_u32 s8, s40, {WS_P_OFF}'); e('    s_addc_u32 s9, s41, 0'); e('    s_and_b32 s9, s9, 0xffff'); e(f'    s_mov_b32 s10, {P_BYTES}'); e('    s_mov_b32 s11, 0x20000')
    e('    s_mov_b32 s12, s36'); e('    s_and_b32 s13, s37, 0xffff'); e(f'    s_mov_b32 s14, {256*1024*2}'); e('    s_mov_b32 s15, 0x20000')
    for s in range(4):
        e(f'    s_mov_b32 s16, {s*256*1024*4}')
        e(f'    buffer_load_dwordx4 v[{4+4*s}:{7+4*s}], v2, s[8:11], s16 offen')
    e('    s_waitcnt vmcnt(2)')
    for i in range(4): e(f'    v_add_f32 v{4+i}, v{4+i}, v{8+i}')
    e('    s_waitcnt vmcnt(1)')
    for i in range(4): e(f'    v_add_f32 v{4+i}, v{4+i}, v{12+i}')
    e('    s_waitcnt vmcnt(0)')
    for i in range(4): e(f'    v_add_f32 v{4+i}, v{4+i}, v{16+i}')
    e('    v_cvt_pk_bf16_f32 v20, v4, v5')
    e('    v_cvt_pk_bf16_f32 v21, v6, v7')
    e('    buffer_store_dwordx2 v[20:21], v3, s[12:15], 0 offen')
    e('    s_waitcnt vmcnt(0)')
    e(f'{name}_done:')
    e('    s_endpgm')

def kd(name, vgpr):
    e(f'.amdhsa_kernel {name}')
    e(f'  .amdhsa_next_free_vgpr {vgpr}')
    e('  .amdhsa_next_free_sgpr 102')
    e(f'  .amdhsa_accum_offset {(vgpr+3)//4*4}')
    e('  .amdhsa_group_segment_fixed_size 0')
    e('  .amdhsa_kernarg_size 56')
    e('  .amdhsa_user_sgpr_count 2')
    e('  .amdhsa_user_sgpr_kernarg_segment_ptr 1')
    e('  .amdhsa_system_sgpr_workgroup_id_x 1')
    e('.end_amdhsa_kernel')

K1 = 'standalone__swiglu_ffn__sampling_kernel'
K2 = 'ffn_down_kernel'
K3 = 'ffn_reduce_kernel'
S1, S2 = 3, 3
e(HEADER.rstrip('\n'))
e(f'; @launch kernel={K1} grid=(224,1,1) block=(512,1,1) lds={S1*24576}')
e(f'; @launch kernel={K2} grid=(256,1,1) block=(512,1,1) lds={S2*16384}')
e(f'; @launch kernel={K3} grid=(256,1,1) block=(256,1,1) lds=0')
e('.amdgcn_target "amdgcn-amd-amdhsa--gfx950"')
e('.text')
gemm_kernel(K1, 2, 16, S1, 2048, 7168, 1, 9)
gemm_kernel(K2, 1, 14, S2, 7168, 2048, 2, 14)
reduce_kernel(K3)
e('.section .rodata,"a"')
e('.p2align 6')
kd(K1, 256); e(".p2align 6"); kd(K2, 256); e('.p2align 6'); kd(K3, 24)
open(sys.argv[1] if len(sys.argv) > 1 else 'standalone__swiglu_ffn__sampling.s', 'w').write('\n'.join(L)+'\n')
```

```python
import sys
DBG = len(sys.argv) > 2

HEADER = open('standalone__swiglu_ffn__sampling.s.ref').read().split('; Override launch geometry')[0]

L = []
def e(s=''): L.append(s)

WS_H_OFF = 0
WS_P_OFF = 2*1024*1024
H_BYTES = 256*3584*2
P_BYTES = 4*256*1024*4

def gemm_kernel(name, NB, KS, S, pitchA, pitchW, mode, D):
    stage_bytes = 8192*(1+NB)
    LPS = 2*(1+NB)
    e(f'.globl {name}')
    e('.p2align 8')
    e(f'.type {name},@function')
    e(f'{name}:')
    nwg = 224 if mode == 1 else 256
    e(f'    s_cmp_ge_u32 s2, {nwg}')
    e(f'    s_cbranch_scc1 {name}_done')
    e('    s_load_dwordx4 s[28:31], s[0:1], 0     ; x, w_gate')
    e('    s_load_dwordx4 s[32:35], s[0:1], 16')
    e('    s_load_dwordx4 s[36:39], s[0:1], 32')
    e('    s_load_dwordx2 s[40:41], s[0:1], 48    ; ws')
    e('    v_and_b32 v1, 63, v0                   ; lane')
    e('    v_lshrrev_b32 v2, 6, v0                ; wave')
    e('    s_nop 0')
    e('    v_readfirstlane_b32 s42, v2')
    e('    s_and_b32 s43, s2, 7                   ; xcd-group')
    e('    s_lshr_b32 s44, s2, 3                  ; j')
    e('    s_and_b32 s45, s44, 3                  ; mblk')
    e('    s_lshr_b32 s46, s44, 2                 ; j>>2')
    if mode == 1:
        e('    s_lshl_b32 s46, s46, 3')
        e('    s_add_u32 s46, s46, s43')
    else:
        e('    s_and_b32 s47, s43, 1')
        e('    s_lshl_b32 s47, s47, 3')
        e('    s_add_u32 s46, s46, s47')
        e('    s_lshr_b32 s47, s43, 1                 ; split')
    e('    s_waitcnt lgkmcnt(0)')
    if mode == 1:
        e('    s_mov_b32 s8, s28'); e('    s_and_b32 s9, s29, 0xffff'); e(f'    s_mov_b32 s10, {256*1024*2}'); e('    s_mov_b32 s11, 0x20000')
        e('    s_mov_b32 s12, s30'); e('    s_and_b32 s13, s31, 0xffff'); e(f'    s_mov_b32 s14, {1024*3584*2}'); e('    s_mov_b32 s15, 0x20000')
        e('    s_mov_b32 s16, s32'); e('    s_and_b32 s17, s33, 0xffff'); e(f'    s_mov_b32 s18, {1024*3584*2}'); e('    s_mov_b32 s19, 0x20000')
        e(f'    s_add_u32 s20, s40, {WS_H_OFF}'); e('    s_addc_u32 s21, s41, 0'); e('    s_and_b32 s21, s21, 0xffff'); e(f'    s_mov_b32 s22, {H_BYTES}'); e('    s_mov_b32 s23, 0x20000')
    else:
        e(f'    s_add_u32 s8, s40, {WS_H_OFF}'); e('    s_addc_u32 s9, s41, 0'); e('    s_and_b32 s9, s9, 0xffff'); e(f'    s_mov_b32 s10, {H_BYTES}'); e('    s_mov_b32 s11, 0x20000')
        e('    s_mov_b32 s12, s34'); e('    s_and_b32 s13, s35, 0xffff'); e(f'    s_mov_b32 s14, {1024*3584*2}'); e('    s_mov_b32 s15, 0x20000')
        e(f'    s_add_u32 s20, s40, {WS_P_OFF}'); e('    s_addc_u32 s21, s41, 0'); e('    s_and_b32 s21, s21, 0xffff'); e(f'    s_mov_b32 s22, {P_BYTES}'); e('    s_mov_b32 s23, 0x20000')
    e('    v_and_b32 v2, 3, v2')
    e('    v_lshrrev_b32 v3, 3, v1                ; l>>3')
    e('    v_lshl_add_u32 v3, v2, 4, v3           ; r0 = 16w + (l>>3)')
    e('    v_and_b32 v4, 7, v1                    ; pos')
    e('    v_lshrrev_b32 v5, 4, v1                ; l>>4')
    e('    v_xor_b32 v6, v4, v5                   ; c (h=0)')
    e('    v_xor_b32 v7, 4, v6                    ; c (h=1)')
    e('    s_lshl_b32 s48, s45, 6                 ; m0')
    e('    v_add_u32 v8, s48, v3')
    e(f'    s_mov_b32 s49, {pitchA}')
    e('    v_mul_lo_u32 v8, v8, s49')
    e(f'    v_add_u32 v9, {8*pitchA}, v8')
    e('    v_lshl_add_u32 v8, v6, 4, v8           ; A voff h=0')
    e('    v_lshl_add_u32 v9, v7, 4, v9           ; A voff h=1')
    e('    v_lshrrev_b32 v10, 1, v4')
    e('    v_and_b32 v11, 2, v3')
    e('    v_xor_b32 v10, v10, v11                ; nb')
    e('    v_lshlrev_b32 v10, 5, v10')
    e('    v_and_b32 v11, 1, v4')
    e('    v_lshl_add_u32 v10, v11, 4, v10')
    e(f'    s_mov_b32 s49, {pitchW}')
    e('    v_mul_lo_u32 v11, v3, s49')
    e('    v_add_u32 v10, v10, v11')
    e('    s_lshl_b32 s48, s46, 7                 ; nblk*128')
    e('    v_add_u32 v10, s48, v10                ; W voff h=0')
    e(f'    v_add_u32 v11, {8*pitchW}, v10         ; W voff h=1')
    if mode == 1:
        e('    s_mov_b32 s24, 0'); e('    s_mov_b32 s25, 0')
    else:
        e(f'    s_mul_i32 s24, s47, {896*2}')
        e(f'    s_mul_i32 s25, s47, {896*pitchW}')
    e('    s_and_b32 s26, s42, 3')
    e('    s_lshl_b32 s26, s26, 11')
    e('    s_cmp_ge_u32 s42, 4')
    e(f'    s_cbranch_scc1 {name}_loader')
    e('    v_lshrrev_b32 v3, 1, v2                ; wm')
    e('    v_and_b32 v4, 31, v1')
    e('    v_lshl_add_u32 v3, v3, 5, v4')
    e('    v_lshrrev_b32 v4, 1, v3')
    e('    v_and_b32 v4, 7, v4')
    e('    v_lshrrev_b32 v5, 5, v1                ; hi')
    e('    v_xor_b32 v4, v4, v5                   ; hi^s')
    e('    v_lshlrev_b32 v5, 7, v3                ; m*128')
    for kk in range(4):
        e(f'    v_xor_b32 v6, {2*kk}, v4')
        e(f'    v_lshl_add_u32 v{12+kk}, v6, 4, v5')
    e('    v_lshrrev_b32 v3, 4, v1                ; g')
    e('    v_lshrrev_b32 v4, 2, v1')
    e('    v_and_b32 v4, 3, v4                    ; r')
    e('    v_and_b32 v5, 3, v1                    ; c')
    e('    v_and_b32 v6, 1, v2                    ; wn')
    e('    v_and_b32 v7, 1, v3')
    e('    v_lshl_add_u32 v6, v6, 1, v7           ; nb')
    e('    v_and_b32 v7, 2, v4')
    e('    v_xor_b32 v6, v6, v7')
    e('    v_lshrrev_b32 v3, 1, v3')
    e('    v_lshl_add_u32 v3, v3, 3, v4           ; krow')
    e('    v_lshlrev_b32 v3, 7, v3')
    e('    v_lshl_add_u32 v3, v6, 5, v3')
    e('    v_lshl_add_u32 v16, v5, 3, v3')
    e('    v_add_u32 v16, 8192, v16')
    ACC = 72
    for i in range(16*NB):
        e(f'    v_mov_b32 v{ACC+i}, 0')
    RB = 32
    def gload(stage):
        rb = RB + (stage % D)*4*LPS
        for h in range(2):
            e(f'    buffer_load_dwordx4 v[{rb+4*h}:{rb+4*h+3}], v{8+h}, s[8:11], s24 offen')
        for b in range(NB):
            for h in range(2):
                r = rb+8+8*b+4*h
                e(f'    buffer_load_dwordx4 v[{r}:{r+3}], v{10+h}, s[{12+4*b}:{15+4*b}], s25 offen')
        e('    s_add_u32 s27, s27, 1')
        e(f'    s_cmp_eq_u32 s27, {KS}')
        e('    s_cselect_b32 s27, 0, s27')
        e('    s_lshl_b32 s24, s27, 7')
        e('    s_add_u32 s24, s24, s56')
        e(f'    s_mul_i32 s25, s27, {64*pitchW}')
        e('    s_add_u32 s25, s25, s57')
    def lwrite(stage):
        rb = RB + (stage % D)*4*LPS
        buf = (stage % S)*stage_bytes
        for i in range(LPS):
            o = buf + (i//2)*8192 + (i%2)*1024
            if o >= 49152: e(f'    ds_write_b128 v18, v[{rb+4*i}:{rb+4*i+3}] offset:{o-49152}')
            else: e(f'    ds_write_b128 v17, v[{rb+4*i}:{rb+4*i+3}] offset:{o}')
    if DBG:
        e('    s_memtime s[52:53]')
        e('    s_memrealtime s[54:55]')
    FR = 20
    per = 4+4*NB
    def reads(k, kk):
        b0 = FR+per*kk
        off = (k % S)*stage_bytes
        e(f'    ds_read_b128 v[{b0}:{b0+3}], v{12+kk} offset:{off}')
        for b in range(NB):
            for t in range(2):
                e(f'    ds_read_b64_tr_b16 v[{b0+4+4*b+2*t}:{b0+5+4*b+2*t}], v16 offset:{off + 8192*b + kk*2048 + t*512}')
    def mfmas(kk):
        b0 = FR+per*kk
        for b in range(NB):
            e(f'    v_mfma_f32_32x32x16_bf16 v[{ACC+16*b}:{ACC+16*b+15}], v[{b0+4+4*b}:{b0+7+4*b}], v[{b0}:{b0+3}], v[{ACC+16*b}:{ACC+16*b+15}]')
    npr = 1+2*NB
    subs = [(k,kk) for k in range(KS) for kk in range(4)]
    def doread(i):
        if i >= len(subs): return False
        k,kk = subs[i]
        if kk == 0:
            e(f'    ; ---- stage {k}')
            e('    s_barrier')
            if DBG: e(f'    s_memtime s[{60+2*k}:{61+2*k}]')
        reads(k,kk); return True
    doread(0); doread(1)
    for i in range(len(subs)):
        more = doread(i+2)
        rem = 2 if more else (1 if i+1 < len(subs) else 0)
        e(f'    s_waitcnt lgkmcnt({rem*npr})')
        mfmas(subs[i][1])
    e('    s_nop 15')
    e('    s_nop 7')
    e('    v_lshrrev_b32 v3, 1, v2')
    e('    v_and_b32 v4, 31, v1')
    e('    v_lshl_add_u32 v3, v3, 5, v4')
    e('    s_lshl_b32 s48, s45, 6')
    e('    v_add_u32 v3, s48, v3                  ; m')
    e('    v_and_b32 v4, 1, v2')
    e('    v_lshlrev_b32 v4, 5, v4')
    e('    v_lshrrev_b32 v5, 5, v1')
    e('    v_lshl_add_u32 v4, v5, 2, v4')
    e('    s_lshl_b32 s48, s46, 6')
    e('    v_add_u32 v4, s48, v4                  ; n base')
    if mode == 1:
        e('    s_mov_b32 s49, 7168')
        e('    v_mul_lo_u32 v3, v3, s49')
        e('    v_lshl_add_u32 v3, v4, 1, v3')
        e('    s_mov_b32 s49, 0xffff0000')
        e('    s_mov_b32 s50, 0xbfb8aa3b              ; -log2(e)')
        for q in range(4):
            for p in range(2):
                r = 4*q+2*p
                G0, G1, U0, U1 = ACC+r, ACC+r+1, ACC+16+r, ACC+17+r
                e(f'    v_cvt_pk_bf16_f32 v20, v{G0}, v{G1}')
                e(f'    v_cvt_pk_bf16_f32 v21, v{U0}, v{U1}')
                e('    v_lshlrev_b32 v22, 16, v20             ; g0')
                e('    v_and_b32 v23, s49, v20                ; g1')
                e('    v_lshlrev_b32 v24, 16, v21             ; u0')
                e('    v_and_b32 v25, s49, v21                ; u1')
                e('    v_mul_f32 v26, s50, v22')
                e('    v_mul_f32 v27, s50, v23')
                e('    v_exp_f32 v26, v26')
                e('    v_exp_f32 v27, v27')
                e('    s_nop 0')
                e('    v_add_f32 v26, 1.0, v26')
                e('    v_add_f32 v27, 1.0, v27')
                e('    v_rcp_f32 v26, v26')
                e('    v_rcp_f32 v27, v27')
                e('    s_nop 0')
                e('    v_mul_f32 v26, v22, v26')
                e('    v_mul_f32 v27, v23, v27')
                e('    v_cvt_pk_bf16_f32 v28, v26, v27')
                e('    v_lshlrev_b32 v26, 16, v28')
                e('    v_and_b32 v27, s49, v28')
                e('    v_mul_f32 v26, v26, v24')
                e('    v_mul_f32 v27, v27, v25')
                e(f'    v_cvt_pk_bf16_f32 v{30+2*(q&1)+p}, v26, v27')
            e(f'    buffer_store_dwordx2 v[{30+2*(q&1)}:{31+2*(q&1)}], v3, s[20:23], 0 offen offset:{16*q}')
    else:
        e('    v_lshlrev_b32 v3, 12, v3               ; m*4096')
        e('    v_lshl_add_u32 v3, v4, 2, v3')
        e(f'    s_mul_i32 s48, s47, {256*1024*4}')
        e('    v_add_u32 v3, s48, v3')
        for q in range(4):
            e(f'    buffer_store_dwordx4 v[{ACC+4*q}:{ACC+4*q+3}], v3, s[20:23], 0 offen offset:{32*q}')
    e('    s_waitcnt vmcnt(0)')
    if DBG:
        e('    s_memtime s[56:57]')
        e('    s_memrealtime s[58:59]')
        e('    s_waitcnt lgkmcnt(0)')
        e('    s_cmp_lg_u32 s2, 0')
        e(f'    s_cbranch_scc1 {name}_done')
        e('    s_cmp_lg_u32 s42, 0')
        e(f'    s_cbranch_scc1 {name}_done')
        e('    s_mov_b32 s8, s38'); e('    s_and_b32 s9, s39, 0xffff'); e('    s_mov_b32 s10, 256'); e('    s_mov_b32 s11, 0x20000')
        e('    v_mov_b32 v3, 0')
        e('    s_sub_u32 s56, s56, s52')
        e('    s_sub_u32 s58, s58, s54')
        e('    v_mov_b32 v4, s56'); e('    buffer_store_dword v4, v3, s[8:11], 0 offen offset:0')
        e('    v_mov_b32 v4, s58'); e('    buffer_store_dword v4, v3, s[8:11], 0 offen offset:4')
        for k in range(KS):
            e(f'    s_sub_u32 s{60+2*k}, s{60+2*k}, s52')
            e(f'    v_mov_b32 v4, s{60+2*k}'); e(f'    buffer_store_dword v4, v3, s[8:11], 0 offen offset:{8+4*k + (0 if mode==1 else 128)}')
        e('    s_waitcnt vmcnt(0)')
    e('    s_endpgm')
    e(f'{name}_loader:')
    e('    v_lshlrev_b32 v17, 4, v1')
    e('    s_mov_b32 s56, s24')
    e('    s_mov_b32 s57, s25')
    e(f'    s_mul_i32 s27, s45, {4 if mode==1 else 3}')
    e('    s_lshr_b32 s48, s2, 5')
    e('    s_add_u32 s27, s27, s48')
    e(f'    s_cmp_ge_u32 s27, {KS}')
    e(f'    s_cselect_b32 s48, {KS}, 0')
    e('    s_sub_u32 s27, s27, s48')
    e('    s_lshl_b32 s24, s27, 7')
    e('    s_add_u32 s24, s24, s56')
    e(f'    s_mul_i32 s25, s27, {64*pitchW}')
    e('    s_add_u32 s25, s25, s57')
    e('    v_add_u32 v17, s26, v17')
    e('    v_add_u32 v18, 49152, v17')
    nissued = 0
    PFX = [0]
    for j in range(KS):
        tgt = min(KS, j+D, 3+2*j)
        while nissued < tgt:
            gload(nissued); nissued += 1
            if mode == 1 and nissued == KS:
                e('    s_mov_b32 s52, s34'); e('    s_and_b32 s53, s35, 0xffff'); e(f'    s_mov_b32 s54, {1024*3584*2}'); e('    s_mov_b32 s55, 0x20000')
                e('    s_lshl_b32 s48, s2, 2')
                e('    s_and_b32 s49, s42, 3')
                e('    s_add_u32 s48, s48, s49')
                e('    s_lshl_b32 s48, s48, 13')
                e('    v_lshlrev_b32 v19, 7, v1')
                e('    buffer_load_dword v19, v19, s[52:55], s48 offen')
                PFX[0] = 1
        e(f'    s_waitcnt vmcnt({(nissued-(j+1))*LPS + PFX[0]})')
        lwrite(j)
        e('    s_waitcnt lgkmcnt(0)')
        e('    s_barrier')
    e('    s_endpgm')
    e(f'{name}_done:')
    e('    s_endpgm')

def reduce_kernel(name):
    e(f'.globl {name}')
    e('.p2align 8')
    e(f'.type {name},@function')
    e(f'{name}:')
    e('    s_cmp_ge_u32 s2, 256')
    e(f'    s_cbranch_scc1 {name}_done')
    e('    s_load_dwordx2 s[36:37], s[0:1], 32    ; out')
    e('    s_load_dwordx2 s[40:41], s[0:1], 48    ; ws')
    e('    s_lshl_b32 s3, s2, 8')
    e('    v_add_u32 v1, s3, v0')
    e('    v_lshlrev_b32 v2, 4, v1')
    e('    v_lshlrev_b32 v3, 3, v1')
    e('    s_waitcnt lgkmcnt(0)')
    e(f'    s_add_u32 s8, s40, {WS_P_OFF}'); e('    s_addc_u32 s9, s41, 0'); e('    s_and_b32 s9, s9, 0xffff'); e(f'    s_mov_b32 s10, {P_BYTES}'); e('    s_mov_b32 s11, 0x20000')
    e('    s_mov_b32 s12, s36'); e('    s_and_b32 s13, s37, 0xffff'); e(f'    s_mov_b32 s14, {256*1024*2}'); e('    s_mov_b32 s15, 0x20000')
    for s in range(4):
        e(f'    s_mov_b32 s16, {s*256*1024*4}')
        e(f'    buffer_load_dwordx4 v[{4+4*s}:{7+4*s}], v2, s[8:11], s16 offen')
    e('    s_waitcnt vmcnt(2)')
    for i in range(4): e(f'    v_add_f32 v{4+i}, v{4+i}, v{8+i}')
    e('    s_waitcnt vmcnt(1)')
    for i in range(4): e(f'    v_add_f32 v{4+i}, v{4+i}, v{12+i}')
    e('    s_waitcnt vmcnt(0)')
    for i in range(4): e(f'    v_add_f32 v{4+i}, v{4+i}, v{16+i}')
    e('    v_cvt_pk_bf16_f32 v20, v4, v5')
    e('    v_cvt_pk_bf16_f32 v21, v6, v7')
    e('    buffer_store_dwordx2 v[20:21], v3, s[12:15], 0 offen')
    e('    s_waitcnt vmcnt(0)')
    e(f'{name}_done:')
    e('    s_endpgm')

def kd(name, vgpr):
    e(f'.amdhsa_kernel {name}')
    e(f'  .amdhsa_next_free_vgpr {vgpr}')
    e('  .amdhsa_next_free_sgpr 102')
    e(f'  .amdhsa_accum_offset {(vgpr+3)//4*4}')
    e('  .amdhsa_group_segment_fixed_size 0')
    e('  .amdhsa_kernarg_size 56')
    e('  .amdhsa_user_sgpr_count 2')
    e('  .amdhsa_user_sgpr_kernarg_segment_ptr 1')
    e('  .amdhsa_system_sgpr_workgroup_id_x 1')
    e('.end_amdhsa_kernel')

K1 = 'standalone__swiglu_ffn__sampling_kernel'
K2 = 'ffn_down_kernel'
K3 = 'ffn_reduce_kernel'
S1, S2 = 3, 3
e(HEADER.rstrip('\n'))
e(f'; @launch kernel={K1} grid=(224,1,1) block=(512,1,1) lds={S1*24576}')
e(f'; @launch kernel={K2} grid=(256,1,1) block=(512,1,1) lds={S2*16384}')
e(f'; @launch kernel={K3} grid=(256,1,1) block=(256,1,1) lds=0')
e('.amdgcn_target "amdgcn-amd-amdhsa--gfx950"')
e('.text')
gemm_kernel(K1, 2, 16, S1, 2048, 7168, 1, 9)
gemm_kernel(K2, 1, 14, S2, 7168, 2048, 2, 14)
reduce_kernel(K3)
e('.section .rodata,"a"')
e('.p2align 6')
kd(K1, 256); e(".p2align 6"); kd(K2, 256); e('.p2align 6'); kd(K3, 24)
open(sys.argv[1] if len(sys.argv) > 1 else 'standalone__swiglu_ffn__sampling.s', 'w').write('\n'.join(L)+'\n')
```

```python
import sys
DBG = len(sys.argv) > 2

HEADER = open('standalone__swiglu_ffn__sampling.s.ref').read().split('; Override launch geometry')[0]

L = []
def e(s=''): L.append(s)

WS_H_OFF = 0
WS_P_OFF = 2*1024*1024
H_BYTES = 256*3584*2
P_BYTES = 4*256*1024*4

def gemm_kernel(name, NB, KS, S, pitchA, pitchW, mode, D):
    stage_bytes = 8192*(1+NB)
    LPS = 2*(1+NB)
    e(f'.globl {name}')
    e('.p2align 8')
    e(f'.type {name},@function')
    e(f'{name}:')
    nwg = 224 if mode == 1 else 256
    e(f'    s_cmp_ge_u32 s2, {nwg}')
    e(f'    s_cbranch_scc1 {name}_done')
    e('    s_load_dwordx4 s[28:31], s[0:1], 0     ; x, w_gate')
    e('    s_load_dwordx4 s[32:35], s[0:1], 16')
    e('    s_load_dwordx4 s[36:39], s[0:1], 32')
    e('    s_load_dwordx2 s[40:41], s[0:1], 48    ; ws')
    e('    v_and_b32 v1, 63, v0                   ; lane')
    e('    v_lshrrev_b32 v2, 6, v0                ; wave')
    e('    s_nop 0')
    e('    v_readfirstlane_b32 s42, v2')
    e('    s_and_b32 s43, s2, 7                   ; xcd-group')
    e('    s_lshr_b32 s44, s2, 3                  ; j')
    e('    s_and_b32 s45, s44, 3                  ; mblk')
    e('    s_lshr_b32 s46, s44, 2                 ; j>>2')
    if mode == 1:
        e('    s_lshl_b32 s46, s46, 3')
        e('    s_add_u32 s46, s46, s43')
    else:
        e('    s_and_b32 s47, s43, 1')
        e('    s_lshl_b32 s47, s47, 3')
        e('    s_add_u32 s46, s46, s47')
        e('    s_lshr_b32 s47, s43, 1                 ; split')
    e('    s_waitcnt lgkmcnt(0)')
    if mode == 1:
        e('    s_mov_b32 s8, s28'); e('    s_and_b32 s9, s29, 0xffff'); e(f'    s_mov_b32 s10, {256*1024*2}'); e('    s_mov_b32 s11, 0x20000')
        e('    s_mov_b32 s12, s30'); e('    s_and_b32 s13, s31, 0xffff'); e(f'    s_mov_b32 s14, {1024*3584*2}'); e('    s_mov_b32 s15, 0x20000')
        e('    s_mov_b32 s16, s32'); e('    s_and_b32 s17, s33, 0xffff'); e(f'    s_mov_b32 s18, {1024*3584*2}'); e('    s_mov_b32 s19, 0x20000')
        e(f'    s_add_u32 s20, s40, {WS_H_OFF}'); e('    s_addc_u32 s21, s41, 0'); e('    s_and_b32 s21, s21, 0xffff'); e(f'    s_mov_b32 s22, {H_BYTES}'); e('    s_mov_b32 s23, 0x20000')
    else:
        e(f'    s_add_u32 s8, s40, {WS_H_OFF}'); e('    s_addc_u32 s9, s41, 0'); e('    s_and_b32 s9, s9, 0xffff'); e(f'    s_mov_b32 s10, {H_BYTES}'); e('    s_mov_b32 s11, 0x20000')
        e('    s_mov_b32 s12, s34'); e('    s_and_b32 s13, s35, 0xffff'); e(f'    s_mov_b32 s14, {1024*3584*2}'); e('    s_mov_b32 s15, 0x20000')
        e(f'    s_add_u32 s20, s40, {WS_P_OFF}'); e('    s_addc_u32 s21, s41, 0'); e('    s_and_b32 s21, s21, 0xffff'); e(f'    s_mov_b32 s22, {P_BYTES}'); e('    s_mov_b32 s23, 0x20000')
    e('    v_and_b32 v2, 3, v2')
    e('    v_lshrrev_b32 v3, 3, v1                ; l>>3')
    e('    v_lshl_add_u32 v3, v2, 4, v3           ; r0 = 16w + (l>>3)')
    e('    v_and_b32 v4, 7, v1                    ; pos')
    e('    v_lshrrev_b32 v5, 4, v1                ; l>>4')
    e('    v_xor_b32 v6, v4, v5                   ; c (h=0)')
    e('    v_xor_b32 v7, 4, v6                    ; c (h=1)')
    e('    s_lshl_b32 s48, s45, 6                 ; m0')
    e('    v_add_u32 v8, s48, v3')
    e(f'    s_mov_b32 s49, {pitchA}')
    e('    v_mul_lo_u32 v8, v8, s49')
    e(f'    v_add_u32 v9, {8*pitchA}, v8')
    e('    v_lshl_add_u32 v8, v6, 4, v8           ; A voff h=0')
    e('    v_lshl_add_u32 v9, v7, 4, v9           ; A voff h=1')
    e('    v_lshrrev_b32 v10, 1, v4')
    e('    v_and_b32 v11, 2, v3')
    e('    v_xor_b32 v10, v10, v11                ; nb')
    e('    v_lshlrev_b32 v10, 5, v10')
    e('    v_and_b32 v11, 1, v4')
    e('    v_lshl_add_u32 v10, v11, 4, v10')
    e(f'    s_mov_b32 s49, {pitchW}')
    e('    v_mul_lo_u32 v11, v3, s49')
    e('    v_add_u32 v10, v10, v11')
    e('    s_lshl_b32 s48, s46, 7                 ; nblk*128')
    e('    v_add_u32 v10, s48, v10                ; W voff h=0')
    e(f'    v_add_u32 v11, {8*pitchW}, v10         ; W voff h=1')
    if mode == 1:
        e('    s_mov_b32 s24, 0'); e('    s_mov_b32 s25, 0')
    else:
        e(f'    s_mul_i32 s24, s47, {896*2}')
        e(f'    s_mul_i32 s25, s47, {896*pitchW}')
    e('    s_and_b32 s26, s42, 3')
    e('    s_lshl_b32 s26, s26, 11')
    e('    s_cmp_ge_u32 s42, 4')
    e(f'    s_cbranch_scc1 {name}_loader')
    e('    v_lshrrev_b32 v3, 1, v2                ; wm')
    e('    v_and_b32 v4, 31, v1')
    e('    v_lshl_add_u32 v3, v3, 5, v4')
    e('    v_lshrrev_b32 v4, 1, v3')
    e('    v_and_b32 v4, 7, v4')
    e('    v_lshrrev_b32 v5, 5, v1                ; hi')
    e('    v_xor_b32 v4, v4, v5                   ; hi^s')
    e('    v_lshlrev_b32 v5, 7, v3                ; m*128')
    for kk in range(4):
        e(f'    v_xor_b32 v6, {2*kk}, v4')
        e(f'    v_lshl_add_u32 v{12+kk}, v6, 4, v5')
    e('    v_lshrrev_b32 v3, 4, v1                ; g')
    e('    v_lshrrev_b32 v4, 2, v1')
    e('    v_and_b32 v4, 3, v4                    ; r')
    e('    v_and_b32 v5, 3, v1                    ; c')
    e('    v_and_b32 v6, 1, v2                    ; wn')
    e('    v_and_b32 v7, 1, v3')
    e('    v_lshl_add_u32 v6, v6, 1, v7           ; nb')
    e('    v_and_b32 v7, 2, v4')
    e('    v_xor_b32 v6, v6, v7')
    e('    v_lshrrev_b32 v3, 1, v3')
    e('    v_lshl_add_u32 v3, v3, 3, v4           ; krow')
    e('    v_lshlrev_b32 v3, 7, v3')
    e('    v_lshl_add_u32 v3, v6, 5, v3')
    e('    v_lshl_add_u32 v16, v5, 3, v3')
    e('    v_add_u32 v16, 8192, v16')
    ACC = 72
    for i in range(16*NB):
        e(f'    v_mov_b32 v{ACC+i}, 0')
    RB = 32
    def gload(stage):
        rb = RB + (stage % D)*4*LPS
        for h in range(2):
            e(f'    buffer_load_dwordx4 v[{rb+4*h}:{rb+4*h+3}], v{8+h}, s[8:11], s24 offen')
        for b in range(NB):
            for h in range(2):
                r = rb+8+8*b+4*h
                e(f'    buffer_load_dwordx4 v[{r}:{r+3}], v{10+h}, s[{12+4*b}:{15+4*b}], s25 offen')
        e('    s_add_u32 s27, s27, 1')
        e(f'    s_cmp_eq_u32 s27, {KS}')
        e('    s_cselect_b32 s27, 0, s27')
        e('    s_lshl_b32 s24, s27, 7')
        e('    s_add_u32 s24, s24, s56')
        e(f'    s_mul_i32 s25, s27, {64*pitchW}')
        e('    s_add_u32 s25, s25, s57')
    def lwrite(stage):
        rb = RB + (stage % D)*4*LPS
        buf = (stage % S)*stage_bytes
        for i in range(LPS):
            o = buf + (i//2)*8192 + (i%2)*1024
            if o >= 49152: e(f'    ds_write_b128 v18, v[{rb+4*i}:{rb+4*i+3}] offset:{o-49152}')
            else: e(f'    ds_write_b128 v17, v[{rb+4*i}:{rb+4*i+3}] offset:{o}')
    if DBG:
        e('    s_memtime s[52:53]')
        e('    s_memrealtime s[54:55]')
    FR = 20
    per = 4+4*NB
    def reads(kk):
        b0 = FR+per*kk
        e(f'    ds_read_b128 v[{b0}:{b0+3}], v{12+kk}')
        for b in range(NB):
            for t in range(2):
                e(f'    ds_read_b64_tr_b16 v[{b0+4+4*b+2*t}:{b0+5+4*b+2*t}], v16 offset:{8192*b + kk*2048 + t*512}')
    def mfmas(kk):
        b0 = FR+per*kk
        for b in range(NB):
            e(f'    v_mfma_f32_32x32x16_bf16 v[{ACC+16*b}:{ACC+16*b+15}], v[{b0+4+4*b}:{b0+7+4*b}], v[{b0}:{b0+3}], v[{ACC+16*b}:{ACC+16*b+15}]')
    npr = 1+2*NB
    e('    s_mov_b32 s60, 0')
    e(f'    s_mov_b32 s63, {stage_bytes}')
    e(f'    s_mov_b32 s61, {KS-1}')
    e('    s_barrier')
    reads(0); reads(1)
    e(f'{name}_kloop:')
    reads(2); e(f'    s_waitcnt lgkmcnt({2*npr})'); mfmas(0)
    reads(3); e(f'    s_waitcnt lgkmcnt({2*npr})'); mfmas(1)
    e(f'    s_cmp_eq_u32 s60, {S-1}')
    e(f'    s_cselect_b32 s62, {-(S-1)*stage_bytes}, s63')
    e('    s_add_u32 s60, s60, 1')
    e(f'    s_cmp_eq_u32 s60, {S}')
    e('    s_cselect_b32 s60, 0, s60')
    for r in (12,13,14,15,16):
        e(f'    v_add_u32 v{r}, s62, v{r}')
    e('    s_barrier')
    reads(0); e(f'    s_waitcnt lgkmcnt({2*npr})'); mfmas(2)
    reads(1); e(f'    s_waitcnt lgkmcnt({2*npr})'); mfmas(3)
    e('    s_sub_u32 s61, s61, 1')
    e('    s_cmp_lg_u32 s61, 0')
    e(f'    s_cbranch_scc1 {name}_kloop')
    reads(2); e(f'    s_waitcnt lgkmcnt({2*npr})'); mfmas(0)
    reads(3); e(f'    s_waitcnt lgkmcnt({2*npr})'); mfmas(1)
    e(f'    s_waitcnt lgkmcnt({npr})'); mfmas(2)
    e('    s_waitcnt lgkmcnt(0)'); mfmas(3)
    e('    s_nop 15')
    e('    s_nop 7')
    e('    v_lshrrev_b32 v3, 1, v2')
    e('    v_and_b32 v4, 31, v1')
    e('    v_lshl_add_u32 v3, v3, 5, v4')
    e('    s_lshl_b32 s48, s45, 6')
    e('    v_add_u32 v3, s48, v3                  ; m')
    e('    v_and_b32 v4, 1, v2')
    e('    v_lshlrev_b32 v4, 5, v4')
    e('    v_lshrrev_b32 v5, 5, v1')
    e('    v_lshl_add_u32 v4, v5, 2, v4')
    e('    s_lshl_b32 s48, s46, 6')
    e('    v_add_u32 v4, s48, v4                  ; n base')
    if mode == 1:
        e('    s_mov_b32 s49, 7168')
        e('    v_mul_lo_u32 v3, v3, s49')
        e('    v_lshl_add_u32 v3, v4, 1, v3')
        e('    s_mov_b32 s49, 0xffff0000')
        e('    s_mov_b32 s50, 0xbfb8aa3b              ; -log2(e)')
        for q in range(4):
            for p in range(2):
                r = 4*q+2*p
                G0, G1, U0, U1 = ACC+r, ACC+r+1, ACC+16+r, ACC+17+r
                e(f'    v_cvt_pk_bf16_f32 v20, v{G0}, v{G1}')
                e(f'    v_cvt_pk_bf16_f32 v21, v{U0}, v{U1}')
                e('    v_lshlrev_b32 v22, 16, v20             ; g0')
                e('    v_and_b32 v23, s49, v20                ; g1')
                e('    v_lshlrev_b32 v24, 16, v21             ; u0')
                e('    v_and_b32 v25, s49, v21                ; u1')
                e('    v_mul_f32 v26, s50, v22')
                e('    v_mul_f32 v27, s50, v23')
                e('    v_exp_f32 v26, v26')
                e('    v_exp_f32 v27, v27')
                e('    s_nop 0')
                e('    v_add_f32 v26, 1.0, v26')
                e('    v_add_f32 v27, 1.0, v27')
                e('    v_rcp_f32 v26, v26')
                e('    v_rcp_f32 v27, v27')
                e('    s_nop 0')
                e('    v_mul_f32 v26, v22, v26')
                e('    v_mul_f32 v27, v23, v27')
                e('    v_cvt_pk_bf16_f32 v28, v26, v27')
                e('    v_lshlrev_b32 v26, 16, v28')
                e('    v_and_b32 v27, s49, v28')
                e('    v_mul_f32 v26, v26, v24')
                e('    v_mul_f32 v27, v27, v25')
                e(f'    v_cvt_pk_bf16_f32 v{30+2*(q&1)+p}, v26, v27')
            e(f'    buffer_store_dwordx2 v[{30+2*(q&1)}:{31+2*(q&1)}], v3, s[20:23], 0 offen offset:{16*q}')
    else:
        e('    v_lshlrev_b32 v3, 12, v3               ; m*4096')
        e('    v_lshl_add_u32 v3, v4, 2, v3')
        e(f'    s_mul_i32 s48, s47, {256*1024*4}')
        e('    v_add_u32 v3, s48, v3')
        for q in range(4):
            e(f'    buffer_store_dwordx4 v[{ACC+4*q}:{ACC+4*q+3}], v3, s[20:23], 0 offen offset:{32*q}')
    e('    s_waitcnt vmcnt(0)')
    if DBG:
        e('    s_memtime s[56:57]')
        e('    s_memrealtime s[58:59]')
        e('    s_waitcnt lgkmcnt(0)')
        e('    s_cmp_lg_u32 s2, 0')
        e(f'    s_cbranch_scc1 {name}_done')
        e('    s_cmp_lg_u32 s42, 0')
        e(f'    s_cbranch_scc1 {name}_done')
        e('    s_mov_b32 s8, s38'); e('    s_and_b32 s9, s39, 0xffff'); e('    s_mov_b32 s10, 256'); e('    s_mov_b32 s11, 0x20000')
        e('    v_mov_b32 v3, 0')
        e('    s_sub_u32 s56, s56, s52')
        e('    s_sub_u32 s58, s58, s54')
        e('    v_mov_b32 v4, s56'); e('    buffer_store_dword v4, v3, s[8:11], 0 offen offset:0')
        e('    v_mov_b32 v4, s58'); e('    buffer_store_dword v4, v3, s[8:11], 0 offen offset:4')
        for k in range(0):
            e(f'    s_sub_u32 s{60+2*k}, s{60+2*k}, s52')
            e(f'    v_mov_b32 v4, s{60+2*k}'); e(f'    buffer_store_dword v4, v3, s[8:11], 0 offen offset:{8+4*k + (0 if mode==1 else 128)}')
        e('    s_waitcnt vmcnt(0)')
    e('    s_endpgm')
    e(f'{name}_loader:')
    e('    v_lshlrev_b32 v17, 4, v1')
    e('    s_mov_b32 s56, s24')
    e('    s_mov_b32 s57, s25')
    e(f'    s_mul_i32 s27, s45, {4 if mode==1 else 3}')
    e('    s_lshr_b32 s48, s2, 5')
    e('    s_add_u32 s27, s27, s48')
    e(f'    s_cmp_ge_u32 s27, {KS}')
    e(f'    s_cselect_b32 s48, {KS}, 0')
    e('    s_sub_u32 s27, s27, s48')
    e('    s_lshl_b32 s24, s27, 7')
    e('    s_add_u32 s24, s24, s56')
    e(f'    s_mul_i32 s25, s27, {64*pitchW}')
    e('    s_add_u32 s25, s25, s57')
    e('    v_add_u32 v17, s26, v17')
    e('    v_add_u32 v18, 49152, v17')
    nissued = 0
    PFX = [0]
    for j in range(KS):
        tgt = min(KS, j+D, 3+2*j)
        while nissued < tgt:
            gload(nissued); nissued += 1
            if mode == 1 and nissued == KS:
                e('    s_mov_b32 s52, s34'); e('    s_and_b32 s53, s35, 0xffff'); e(f'    s_mov_b32 s54, {1024*3584*2}'); e('    s_mov_b32 s55, 0x20000')
                e('    s_lshl_b32 s48, s2, 2')
                e('    s_and_b32 s49, s42, 3')
                e('    s_add_u32 s48, s48, s49')
                e('    s_lshl_b32 s48, s48, 13')
                e('    v_lshlrev_b32 v19, 7, v1')
                e('    buffer_load_dword v19, v19, s[52:55], s48 offen')
                PFX[0] = 1
        e(f'    s_waitcnt vmcnt({(nissued-(j+1))*LPS + PFX[0]})')
        lwrite(j)
        e('    s_waitcnt lgkmcnt(0)')
        e('    s_barrier')
    e('    s_endpgm')
    e(f'{name}_done:')
    e('    s_endpgm')

def reduce_kernel(name):
    e(f'.globl {name}')
    e('.p2align 8')
    e(f'.type {name},@function')
    e(f'{name}:')
    e('    s_cmp_ge_u32 s2, 256')
    e(f'    s_cbranch_scc1 {name}_done')
    e('    s_load_dwordx2 s[36:37], s[0:1], 32    ; out')
    e('    s_load_dwordx2 s[40:41], s[0:1], 48    ; ws')
    e('    s_lshl_b32 s3, s2, 8')
    e('    v_add_u32 v1, s3, v0')
    e('    v_lshlrev_b32 v2, 4, v1')
    e('    v_lshlrev_b32 v3, 3, v1')
    e('    s_waitcnt lgkmcnt(0)')
    e(f'    s_add_u32 s8, s40, {WS_P_OFF}'); e('    s_addc_u32 s9, s41, 0'); e('    s_and_b32 s9, s9, 0xffff'); e(f'    s_mov_b32 s10, {P_BYTES}'); e('    s_mov_b32 s11, 0x20000')
    e('    s_mov_b32 s12, s36'); e('    s_and_b32 s13, s37, 0xffff'); e(f'    s_mov_b32 s14, {256*1024*2}'); e('    s_mov_b32 s15, 0x20000')
    for s in range(4):
        e(f'    s_mov_b32 s16, {s*256*1024*4}')
        e(f'    buffer_load_dwordx4 v[{4+4*s}:{7+4*s}], v2, s[8:11], s16 offen')
    e('    s_waitcnt vmcnt(2)')
    for i in range(4): e(f'    v_add_f32 v{4+i}, v{4+i}, v{8+i}')
    e('    s_waitcnt vmcnt(1)')
    for i in range(4): e(f'    v_add_f32 v{4+i}, v{4+i}, v{12+i}')
    e('    s_waitcnt vmcnt(0)')
    for i in range(4): e(f'    v_add_f32 v{4+i}, v{4+i}, v{16+i}')
    e('    v_cvt_pk_bf16_f32 v20, v4, v5')
    e('    v_cvt_pk_bf16_f32 v21, v6, v7')
    e('    buffer_store_dwordx2 v[20:21], v3, s[12:15], 0 offen')
    e('    s_waitcnt vmcnt(0)')
    e(f'{name}_done:')
    e('    s_endpgm')

def kd(name, vgpr):
    e(f'.amdhsa_kernel {name}')
    e(f'  .amdhsa_next_free_vgpr {vgpr}')
    e('  .amdhsa_next_free_sgpr 102')
    e(f'  .amdhsa_accum_offset {(vgpr+3)//4*4}')
    e('  .amdhsa_group_segment_fixed_size 0')
    e('  .amdhsa_kernarg_size 56')
    e('  .amdhsa_user_sgpr_count 2')
    e('  .amdhsa_user_sgpr_kernarg_segment_ptr 1')
    e('  .amdhsa_system_sgpr_workgroup_id_x 1')
    e('.end_amdhsa_kernel')

K1 = 'standalone__swiglu_ffn__sampling_kernel'
K2 = 'ffn_down_kernel'
K3 = 'ffn_reduce_kernel'
S1, S2 = 3, 3
e(HEADER.rstrip('\n'))
e(f'; @launch kernel={K1} grid=(224,1,1) block=(512,1,1) lds={S1*24576}')
e(f'; @launch kernel={K2} grid=(256,1,1) block=(512,1,1) lds={S2*16384}')
e(f'; @launch kernel={K3} grid=(256,1,1) block=(256,1,1) lds=0')
e('.amdgcn_target "amdgcn-amd-amdhsa--gfx950"')
e('.text')
gemm_kernel(K1, 2, 16, S1, 2048, 7168, 1, 3)
gemm_kernel(K2, 1, 14, S2, 7168, 2048, 2, 4)
reduce_kernel(K3)
e('.section .rodata,"a"')
e('.p2align 6')
kd(K1, 128); e(".p2align 6"); kd(K2, 128); e('.p2align 6'); kd(K3, 24)
open(sys.argv[1] if len(sys.argv) > 1 else 'standalone__swiglu_ffn__sampling.s', 'w').write('\n'.join(L)+'\n')
```

```python
import sys
DBG = len(sys.argv) > 2

HEADER = open('standalone__swiglu_ffn__sampling.s.ref').read().split('; Override launch geometry')[0]

L = []
def e(s=''): L.append(s)

WS_H_OFF = 0
WS_P_OFF = 2*1024*1024
H_BYTES = 256*3584*2
P_BYTES = 4*256*1024*4

def gemm_kernel(name, NB, KS, S, pitchA, pitchW, mode, D):
    stage_bytes = 8192*NB
    SX = D+3
    XBASE = S*stage_bytes
    LPS = 2*(1+NB)
    e(f'.globl {name}')
    e('.p2align 8')
    e(f'.type {name},@function')
    e(f'{name}:')
    nwg = 224 if mode == 1 else 256
    e(f'    s_cmp_ge_u32 s2, {nwg}')
    e(f'    s_cbranch_scc1 {name}_done')
    e('    s_load_dwordx4 s[28:31], s[0:1], 0     ; x, w_gate')
    e('    s_load_dwordx4 s[32:35], s[0:1], 16')
    e('    s_load_dwordx4 s[36:39], s[0:1], 32')
    e('    s_load_dwordx2 s[40:41], s[0:1], 48    ; ws')
    e('    v_and_b32 v1, 63, v0                   ; lane')
    e('    v_lshrrev_b32 v2, 6, v0                ; wave')
    e('    s_nop 0')
    e('    v_readfirstlane_b32 s42, v2')
    e('    s_and_b32 s43, s2, 7                   ; xcd-group')
    e('    s_lshr_b32 s44, s2, 3                  ; j')
    e('    s_and_b32 s45, s44, 3                  ; mblk')
    e('    s_lshr_b32 s46, s44, 2                 ; j>>2')
    if mode == 1:
        e('    s_lshl_b32 s46, s46, 3')
        e('    s_add_u32 s46, s46, s43')
    else:
        e('    s_and_b32 s47, s43, 1')
        e('    s_lshl_b32 s47, s47, 3')
        e('    s_add_u32 s46, s46, s47')
        e('    s_lshr_b32 s47, s43, 1                 ; split')
    e('    s_waitcnt lgkmcnt(0)')
    if mode == 1:
        e('    s_mov_b32 s8, s28'); e('    s_and_b32 s9, s29, 0xffff'); e(f'    s_mov_b32 s10, {256*1024*2}'); e('    s_mov_b32 s11, 0x20000')
        e('    s_mov_b32 s12, s30'); e('    s_and_b32 s13, s31, 0xffff'); e(f'    s_mov_b32 s14, {1024*3584*2}'); e('    s_mov_b32 s15, 0x20000')
        e('    s_mov_b32 s16, s32'); e('    s_and_b32 s17, s33, 0xffff'); e(f'    s_mov_b32 s18, {1024*3584*2}'); e('    s_mov_b32 s19, 0x20000')
        e(f'    s_add_u32 s20, s40, {WS_H_OFF}'); e('    s_addc_u32 s21, s41, 0'); e('    s_and_b32 s21, s21, 0xffff'); e(f'    s_mov_b32 s22, {H_BYTES}'); e('    s_mov_b32 s23, 0x20000')
    else:
        e(f'    s_add_u32 s8, s40, {WS_H_OFF}'); e('    s_addc_u32 s9, s41, 0'); e('    s_and_b32 s9, s9, 0xffff'); e(f'    s_mov_b32 s10, {H_BYTES}'); e('    s_mov_b32 s11, 0x20000')
        e('    s_mov_b32 s12, s34'); e('    s_and_b32 s13, s35, 0xffff'); e(f'    s_mov_b32 s14, {1024*3584*2}'); e('    s_mov_b32 s15, 0x20000')
        e(f'    s_add_u32 s20, s40, {WS_P_OFF}'); e('    s_addc_u32 s21, s41, 0'); e('    s_and_b32 s21, s21, 0xffff'); e(f'    s_mov_b32 s22, {P_BYTES}'); e('    s_mov_b32 s23, 0x20000')
    e('    v_and_b32 v2, 3, v2')
    e('    v_lshrrev_b32 v3, 3, v1                ; l>>3')
    e('    v_lshl_add_u32 v3, v2, 4, v3           ; r0 = 16w + (l>>3)')
    e('    v_and_b32 v4, 7, v1                    ; pos')
    e('    v_lshrrev_b32 v5, 4, v1                ; l>>4')
    e('    v_xor_b32 v6, v4, v5                   ; c (h=0)')
    e('    v_xor_b32 v7, 4, v6                    ; c (h=1)')
    e('    s_lshl_b32 s48, s45, 6                 ; m0')
    e('    v_add_u32 v8, s48, v3')
    e(f'    s_mov_b32 s49, {pitchA}')
    e('    v_mul_lo_u32 v8, v8, s49')
    e(f'    v_add_u32 v9, {8*pitchA}, v8')
    e('    v_lshl_add_u32 v8, v6, 4, v8           ; A voff h=0')
    e('    v_lshl_add_u32 v9, v7, 4, v9           ; A voff h=1')
    e('    v_lshrrev_b32 v10, 1, v4')
    e('    v_and_b32 v11, 2, v3')
    e('    v_xor_b32 v10, v10, v11                ; nb')
    e('    v_lshlrev_b32 v10, 5, v10')
    e('    v_and_b32 v11, 1, v4')
    e('    v_lshl_add_u32 v10, v11, 4, v10')
    e(f'    s_mov_b32 s49, {pitchW}')
    e('    v_mul_lo_u32 v11, v3, s49')
    e('    v_add_u32 v10, v10, v11')
    e('    s_lshl_b32 s48, s46, 7                 ; nblk*128')
    e('    v_add_u32 v10, s48, v10                ; W voff h=0')
    e(f'    v_add_u32 v11, {8*pitchW}, v10         ; W voff h=1')
    if mode == 1:
        e('    s_mov_b32 s24, 0'); e('    s_mov_b32 s25, 0')
    else:
        e(f'    s_mul_i32 s24, s47, {896*2}')
        e(f'    s_mul_i32 s25, s47, {896*pitchW}')
    e('    s_and_b32 s26, s42, 3')
    e('    s_lshl_b32 s26, s26, 11')
    e('    s_cmp_ge_u32 s42, 4')
    e(f'    s_cbranch_scc1 {name}_loader')
    e('    v_lshrrev_b32 v3, 1, v2                ; wm')
    e('    v_and_b32 v4, 31, v1')
    e('    v_lshl_add_u32 v3, v3, 5, v4')
    e('    v_lshrrev_b32 v4, 1, v3')
    e('    v_and_b32 v4, 7, v4')
    e('    v_lshrrev_b32 v5, 5, v1                ; hi')
    e('    v_xor_b32 v4, v4, v5                   ; hi^s')
    e('    v_lshlrev_b32 v5, 7, v3                ; m*128')
    for kk in range(4):
        e(f'    v_xor_b32 v6, {2*kk}, v4')
        e(f'    v_lshl_add_u32 v{12+kk}, v6, 4, v5')
        e(f'    v_add_u32 v{12+kk}, {XBASE}, v{12+kk}')
    e('    v_lshrrev_b32 v3, 4, v1                ; g')
    e('    v_lshrrev_b32 v4, 2, v1')
    e('    v_and_b32 v4, 3, v4                    ; r')
    e('    v_and_b32 v5, 3, v1                    ; c')
    e('    v_and_b32 v6, 1, v2                    ; wn')
    e('    v_and_b32 v7, 1, v3')
    e('    v_lshl_add_u32 v6, v6, 1, v7           ; nb')
    e('    v_and_b32 v7, 2, v4')
    e('    v_xor_b32 v6, v6, v7')
    e('    v_lshrrev_b32 v3, 1, v3')
    e('    v_lshl_add_u32 v3, v3, 3, v4           ; krow')
    e('    v_lshlrev_b32 v3, 7, v3')
    e('    v_lshl_add_u32 v3, v6, 5, v3')
    e('    v_lshl_add_u32 v16, v5, 3, v3')
    ACC = 72
    for i in range(16*NB):
        e(f'    v_mov_b32 v{ACC+i}, 0')
    RB = 32
    def gload(stage):
        rb = RB + (stage % D)*4*LPS
        for h in range(2):
            e(f'    s_add_u32 m0, s26, {XBASE + (stage % SX)*8192 + h*1024}')
            e('    s_nop 0')
            e(f'    buffer_load_dwordx4 v{8+h}, s[8:11], s24 offen lds')
        for b in range(NB):
            for h in range(2):
                r = rb+8+8*b+4*h
                e(f'    buffer_load_dwordx4 v[{r}:{r+3}], v{10+h}, s[{12+4*b}:{15+4*b}], s25 offen')
        e('    s_add_u32 s27, s27, 1')
        e(f'    s_cmp_eq_u32 s27, {KS}')
        e('    s_cselect_b32 s27, 0, s27')
        e('    s_lshl_b32 s24, s27, 7')
        e('    s_add_u32 s24, s24, s56')
        e(f'    s_mul_i32 s25, s27, {64*pitchW}')
        e('    s_add_u32 s25, s25, s57')
    def lwrite(stage):
        rb = RB + (stage % D)*4*LPS
        buf = (stage % S)*stage_bytes
        for i in range(2, LPS):
            o = buf + (i//2-1)*8192 + (i%2)*1024
            if o >= 49152: e(f'    ds_write_b128 v18, v[{rb+4*i}:{rb+4*i+3}] offset:{o-49152}')
            else: e(f'    ds_write_b128 v17, v[{rb+4*i}:{rb+4*i+3}] offset:{o}')
    if DBG:
        e('    s_memtime s[52:53]')
        e('    s_memrealtime s[54:55]')
    FR = 20
    per = 4+4*NB
    def reads(kk):
        b0 = FR+per*kk
        e(f'    ds_read_b128 v[{b0}:{b0+3}], v{12+kk}')
        for b in range(NB):
            for t in range(2):
                e(f'    ds_read_b64_tr_b16 v[{b0+4+4*b+2*t}:{b0+5+4*b+2*t}], v16 offset:{8192*b + kk*2048 + t*512}')
    def mfmas(kk):
        b0 = FR+per*kk
        for b in range(NB):
            e(f'    v_mfma_f32_32x32x16_bf16 v[{ACC+16*b}:{ACC+16*b+15}], v[{b0+4+4*b}:{b0+7+4*b}], v[{b0}:{b0+3}], v[{ACC+16*b}:{ACC+16*b+15}]')
    npr = 1+2*NB
    e('    s_mov_b32 s60, 0')
    e(f'    s_mov_b32 s63, {stage_bytes}')
    e('    s_mov_b32 s64, 0')
    e('    s_mov_b32 s65, 8192')
    e(f'    s_mov_b32 s61, {KS-1}')
    e('    s_barrier')
    reads(0); reads(1)
    e(f'{name}_kloop:')
    reads(2); e(f'    s_waitcnt lgkmcnt({2*npr})'); mfmas(0)
    reads(3); e(f'    s_waitcnt lgkmcnt({2*npr})'); mfmas(1)
    e(f'    s_cmp_eq_u32 s60, {S-1}')
    e(f'    s_cselect_b32 s62, {-(S-1)*stage_bytes}, s63')
    e('    s_add_u32 s60, s60, 1')
    e(f'    s_cmp_eq_u32 s60, {S}')
    e('    s_cselect_b32 s60, 0, s60')
    e('    v_add_u32 v16, s62, v16')
    e(f'    s_cmp_eq_u32 s64, {SX-1}')
    e(f'    s_cselect_b32 s62, {-(SX-1)*8192}, s65')
    e('    s_add_u32 s64, s64, 1')
    e(f'    s_cmp_eq_u32 s64, {SX}')
    e('    s_cselect_b32 s64, 0, s64')
    for r in (12,13,14,15):
        e(f'    v_add_u32 v{r}, s62, v{r}')
    e('    s_barrier')
    reads(0); e(f'    s_waitcnt lgkmcnt({2*npr})'); mfmas(2)
    reads(1); e(f'    s_waitcnt lgkmcnt({2*npr})'); mfmas(3)
    e('    s_sub_u32 s61, s61, 1')
    e('    s_cmp_lg_u32 s61, 0')
    e(f'    s_cbranch_scc1 {name}_kloop')
    reads(2); e(f'    s_waitcnt lgkmcnt({2*npr})'); mfmas(0)
    reads(3); e(f'    s_waitcnt lgkmcnt({2*npr})'); mfmas(1)
    e(f'    s_waitcnt lgkmcnt({npr})'); mfmas(2)
    e('    s_waitcnt lgkmcnt(0)'); mfmas(3)
    e('    s_nop 15')
    e('    s_nop 7')
    e('    v_lshrrev_b32 v3, 1, v2')
    e('    v_and_b32 v4, 31, v1')
    e('    v_lshl_add_u32 v3, v3, 5, v4')
    e('    s_lshl_b32 s48, s45, 6')
    e('    v_add_u32 v3, s48, v3                  ; m')
    e('    v_and_b32 v4, 1, v2')
    e('    v_lshlrev_b32 v4, 5, v4')
    e('    v_lshrrev_b32 v5, 5, v1')
    e('    v_lshl_add_u32 v4, v5, 2, v4')
    e('    s_lshl_b32 s48, s46, 6')
    e('    v_add_u32 v4, s48, v4                  ; n base')
    if mode == 1:
        e('    s_mov_b32 s49, 7168')
        e('    v_mul_lo_u32 v3, v3, s49')
        e('    v_lshl_add_u32 v3, v4, 1, v3')
        e('    s_mov_b32 s49, 0xffff0000')
        e('    s_mov_b32 s50, 0xbfb8aa3b              ; -log2(e)')
        for q in range(4):
            for p in range(2):
                r = 4*q+2*p
                G0, G1, U0, U1 = ACC+r, ACC+r+1, ACC+16+r, ACC+17+r
                e(f'    v_cvt_pk_bf16_f32 v20, v{G0}, v{G1}')
                e(f'    v_cvt_pk_bf16_f32 v21, v{U0}, v{U1}')
                e('    v_lshlrev_b32 v22, 16, v20             ; g0')
                e('    v_and_b32 v23, s49, v20                ; g1')
                e('    v_lshlrev_b32 v24, 16, v21             ; u0')
                e('    v_and_b32 v25, s49, v21                ; u1')
                e('    v_mul_f32 v26, s50, v22')
                e('    v_mul_f32 v27, s50, v23')
                e('    v_exp_f32 v26, v26')
                e('    v_exp_f32 v27, v27')
                e('    s_nop 0')
                e('    v_add_f32 v26, 1.0, v26')
                e('    v_add_f32 v27, 1.0, v27')
                e('    v_rcp_f32 v26, v26')
                e('    v_rcp_f32 v27, v27')
                e('    s_nop 0')
                e('    v_mul_f32 v26, v22, v26')
                e('    v_mul_f32 v27, v23, v27')
                e('    v_cvt_pk_bf16_f32 v28, v26, v27')
                e('    v_lshlrev_b32 v26, 16, v28')
                e('    v_and_b32 v27, s49, v28')
                e('    v_mul_f32 v26, v26, v24')
                e('    v_mul_f32 v27, v27, v25')
                e(f'    v_cvt_pk_bf16_f32 v{30+2*(q&1)+p}, v26, v27')
            e(f'    buffer_store_dwordx2 v[{30+2*(q&1)}:{31+2*(q&1)}], v3, s[20:23], 0 offen offset:{16*q}')
    else:
        e('    v_lshlrev_b32 v3, 12, v3               ; m*4096')
        e('    v_lshl_add_u32 v3, v4, 2, v3')
        e(f'    s_mul_i32 s48, s47, {256*1024*4}')
        e('    v_add_u32 v3, s48, v3')
        for q in range(4):
            e(f'    buffer_store_dwordx4 v[{ACC+4*q}:{ACC+4*q+3}], v3, s[20:23], 0 offen offset:{32*q}')
    e('    s_waitcnt vmcnt(0)')
    if DBG:
        e('    s_memtime s[56:57]')
        e('    s_memrealtime s[58:59]')
        e('    s_waitcnt lgkmcnt(0)')
        e('    s_cmp_lg_u32 s2, 0')
        e(f'    s_cbranch_scc1 {name}_done')
        e('    s_cmp_lg_u32 s42, 0')
        e(f'    s_cbranch_scc1 {name}_done')
        e('    s_mov_b32 s8, s38'); e('    s_and_b32 s9, s39, 0xffff'); e('    s_mov_b32 s10, 256'); e('    s_mov_b32 s11, 0x20000')
        e('    v_mov_b32 v3, 0')
        e('    s_sub_u32 s56, s56, s52')
        e('    s_sub_u32 s58, s58, s54')
        e('    v_mov_b32 v4, s56'); e('    buffer_store_dword v4, v3, s[8:11], 0 offen offset:0')
        e('    v_mov_b32 v4, s58'); e('    buffer_store_dword v4, v3, s[8:11], 0 offen offset:4')
        for k in range(0):
            e(f'    s_sub_u32 s{60+2*k}, s{60+2*k}, s52')
            e(f'    v_mov_b32 v4, s{60+2*k}'); e(f'    buffer_store_dword v4, v3, s[8:11], 0 offen offset:{8+4*k + (0 if mode==1 else 128)}')
        e('    s_waitcnt vmcnt(0)')
    e('    s_endpgm')
    e(f'{name}_loader:')
    e('    v_lshlrev_b32 v17, 4, v1')
    e('    s_mov_b32 s56, s24')
    e('    s_mov_b32 s57, s25')
    e(f'    s_mul_i32 s27, s45, {4 if mode==1 else 3}')
    e('    s_lshr_b32 s48, s2, 5')
    e('    s_add_u32 s27, s27, s48')
    e(f'    s_cmp_ge_u32 s27, {KS}')
    e(f'    s_cselect_b32 s48, {KS}, 0')
    e('    s_sub_u32 s27, s27, s48')
    e('    s_lshl_b32 s24, s27, 7')
    e('    s_add_u32 s24, s24, s56')
    e(f'    s_mul_i32 s25, s27, {64*pitchW}')
    e('    s_add_u32 s25, s25, s57')
    e('    v_add_u32 v17, s26, v17')
    e('    v_add_u32 v18, 49152, v17')
    nissued = 0
    PFX = [0]
    for j in range(KS):
        tgt = min(KS, j+D, 3+2*j)
        while nissued < tgt:
            gload(nissued); nissued += 1
            if mode == 1 and nissued == KS:
                e('    s_mov_b32 s52, s34'); e('    s_and_b32 s53, s35, 0xffff'); e(f'    s_mov_b32 s54, {1024*3584*2}'); e('    s_mov_b32 s55, 0x20000')
                e('    s_lshl_b32 s48, s2, 2')
                e('    s_and_b32 s49, s42, 3')
                e('    s_add_u32 s48, s48, s49')
                e('    s_lshl_b32 s48, s48, 13')
                e('    v_lshlrev_b32 v19, 7, v1')
                e('    buffer_load_dword v19, v19, s[52:55], s48 offen')
                PFX[0] = 1
        e(f'    s_waitcnt vmcnt({(nissued-(j+1))*LPS + PFX[0]})')
        lwrite(j)
        e('    s_waitcnt lgkmcnt(0)')
        e('    s_barrier')
    e('    s_endpgm')
    e(f'{name}_done:')
    e('    s_endpgm')

def reduce_kernel(name):
    e(f'.globl {name}')
    e('.p2align 8')
    e(f'.type {name},@function')
    e(f'{name}:')
    e('    s_cmp_ge_u32 s2, 256')
    e(f'    s_cbranch_scc1 {name}_done')
    e('    s_load_dwordx2 s[36:37], s[0:1], 32    ; out')
    e('    s_load_dwordx2 s[40:41], s[0:1], 48    ; ws')
    e('    s_lshl_b32 s3, s2, 8')
    e('    v_add_u32 v1, s3, v0')
    e('    v_lshlrev_b32 v2, 4, v1')
    e('    v_lshlrev_b32 v3, 3, v1')
    e('    s_waitcnt lgkmcnt(0)')
    e(f'    s_add_u32 s8, s40, {WS_P_OFF}'); e('    s_addc_u32 s9, s41, 0'); e('    s_and_b32 s9, s9, 0xffff'); e(f'    s_mov_b32 s10, {P_BYTES}'); e('    s_mov_b32 s11, 0x20000')
    e('    s_mov_b32 s12, s36'); e('    s_and_b32 s13, s37, 0xffff'); e(f'    s_mov_b32 s14, {256*1024*2}'); e('    s_mov_b32 s15, 0x20000')
    for s in range(4):
        e(f'    s_mov_b32 s16, {s*256*1024*4}')
        e(f'    buffer_load_dwordx4 v[{4+4*s}:{7+4*s}], v2, s[8:11], s16 offen')
    e('    s_waitcnt vmcnt(2)')
    for i in range(4): e(f'    v_add_f32 v{4+i}, v{4+i}, v{8+i}')
    e('    s_waitcnt vmcnt(1)')
    for i in range(4): e(f'    v_add_f32 v{4+i}, v{4+i}, v{12+i}')
    e('    s_waitcnt vmcnt(0)')
    for i in range(4): e(f'    v_add_f32 v{4+i}, v{4+i}, v{16+i}')
    e('    v_cvt_pk_bf16_f32 v20, v4, v5')
    e('    v_cvt_pk_bf16_f32 v21, v6, v7')
    e('    buffer_store_dwordx2 v[20:21], v3, s[12:15], 0 offen')
    e('    s_waitcnt vmcnt(0)')
    e(f'{name}_done:')
    e('    s_endpgm')

def kd(name, vgpr):
    e(f'.amdhsa_kernel {name}')
    e(f'  .amdhsa_next_free_vgpr {vgpr}')
    e('  .amdhsa_next_free_sgpr 102')
    e(f'  .amdhsa_accum_offset {(vgpr+3)//4*4}')
    e('  .amdhsa_group_segment_fixed_size 0')
    e('  .amdhsa_kernarg_size 56')
    e('  .amdhsa_user_sgpr_count 2')
    e('  .amdhsa_user_sgpr_kernarg_segment_ptr 1')
    e('  .amdhsa_system_sgpr_workgroup_id_x 1')
    e('.end_amdhsa_kernel')

K1 = 'standalone__swiglu_ffn__sampling_kernel'
K2 = 'ffn_down_kernel'
K3 = 'ffn_reduce_kernel'
S1, S2 = 3, 3
e(HEADER.rstrip('\n'))
e(f'; @launch kernel={K1} grid=(224,1,1) block=(512,1,1) lds={S1*16384+6*8192}')
e(f'; @launch kernel={K2} grid=(256,1,1) block=(512,1,1) lds={S2*8192+7*8192}')
e(f'; @launch kernel={K3} grid=(256,1,1) block=(256,1,1) lds=0')
e('.amdgcn_target "amdgcn-amd-amdhsa--gfx950"')
e('.text')
gemm_kernel(K1, 2, 16, S1, 2048, 7168, 1, 3)
gemm_kernel(K2, 1, 14, S2, 7168, 2048, 2, 4)
reduce_kernel(K3)
e('.section .rodata,"a"')
e('.p2align 6')
kd(K1, 128); e(".p2align 6"); kd(K2, 128); e('.p2align 6'); kd(K3, 24)
open(sys.argv[1] if len(sys.argv) > 1 else 'standalone__swiglu_ffn__sampling.s', 'w').write('\n'.join(L)+'\n')
```

```python
import sys
DBG = len(sys.argv) > 2

HEADER = open('standalone__swiglu_ffn__sampling.s.ref').read().split('; Override launch geometry')[0]

L = []
def e(s=''): L.append(s)

WS_H_OFF = 0
WS_P_OFF = 2*1024*1024
H_BYTES = 256*3584*2
P_BYTES = 4*256*1024*4

def gemm_kernel(name, NB, KS, S, pitchA, pitchW, mode, D):
    stage_bytes = 8192*NB
    SX = D+3
    S = SX
    XBASE = S*stage_bytes
    LPS = 2*(1+NB)
    e(f'.globl {name}')
    e('.p2align 8')
    e(f'.type {name},@function')
    e(f'{name}:')
    nwg = 224 if mode == 1 else 256
    e(f'    s_cmp_ge_u32 s2, {nwg}')
    e(f'    s_cbranch_scc1 {name}_done')
    e('    s_load_dwordx4 s[28:31], s[0:1], 0     ; x, w_gate')
    e('    s_load_dwordx4 s[32:35], s[0:1], 16')
    e('    s_load_dwordx4 s[36:39], s[0:1], 32')
    e('    s_load_dwordx2 s[40:41], s[0:1], 48    ; ws')
    e('    v_and_b32 v1, 63, v0                   ; lane')
    e('    v_lshrrev_b32 v2, 6, v0                ; wave')
    e('    s_nop 0')
    e('    v_readfirstlane_b32 s42, v2')
    e('    s_and_b32 s43, s2, 7                   ; xcd-group')
    e('    s_lshr_b32 s44, s2, 3                  ; j')
    e('    s_and_b32 s45, s44, 3                  ; mblk')
    e('    s_lshr_b32 s46, s44, 2                 ; j>>2')
    if mode == 1:
        e('    s_lshl_b32 s46, s46, 3')
        e('    s_add_u32 s46, s46, s43')
    else:
        e('    s_and_b32 s47, s43, 1')
        e('    s_lshl_b32 s47, s47, 3')
        e('    s_add_u32 s46, s46, s47')
        e('    s_lshr_b32 s47, s43, 1                 ; split')
    e('    s_waitcnt lgkmcnt(0)')
    if mode == 1:
        e('    s_mov_b32 s8, s28'); e('    s_and_b32 s9, s29, 0xffff'); e(f'    s_mov_b32 s10, {256*1024*2}'); e('    s_mov_b32 s11, 0x20000')
        e('    s_mov_b32 s12, s30'); e('    s_and_b32 s13, s31, 0xffff'); e(f'    s_mov_b32 s14, {1024*3584*2}'); e('    s_mov_b32 s15, 0x20000')
        e('    s_mov_b32 s16, s32'); e('    s_and_b32 s17, s33, 0xffff'); e(f'    s_mov_b32 s18, {1024*3584*2}'); e('    s_mov_b32 s19, 0x20000')
        e(f'    s_add_u32 s20, s40, {WS_H_OFF}'); e('    s_addc_u32 s21, s41, 0'); e('    s_and_b32 s21, s21, 0xffff'); e(f'    s_mov_b32 s22, {H_BYTES}'); e('    s_mov_b32 s23, 0x20000')
    else:
        e(f'    s_add_u32 s8, s40, {WS_H_OFF}'); e('    s_addc_u32 s9, s41, 0'); e('    s_and_b32 s9, s9, 0xffff'); e(f'    s_mov_b32 s10, {H_BYTES}'); e('    s_mov_b32 s11, 0x20000')
        e('    s_mov_b32 s12, s34'); e('    s_and_b32 s13, s35, 0xffff'); e(f'    s_mov_b32 s14, {1024*3584*2}'); e('    s_mov_b32 s15, 0x20000')
        e(f'    s_add_u32 s20, s40, {WS_P_OFF}'); e('    s_addc_u32 s21, s41, 0'); e('    s_and_b32 s21, s21, 0xffff'); e(f'    s_mov_b32 s22, {P_BYTES}'); e('    s_mov_b32 s23, 0x20000')
    e('    v_and_b32 v2, 3, v2')
    e('    v_lshrrev_b32 v3, 3, v1                ; l>>3')
    e('    v_lshl_add_u32 v3, v2, 4, v3           ; r0 = 16w + (l>>3)')
    e('    v_and_b32 v4, 7, v1                    ; pos')
    e('    v_lshrrev_b32 v5, 4, v1                ; l>>4')
    e('    v_xor_b32 v6, v4, v5                   ; c (h=0)')
    e('    v_xor_b32 v7, 4, v6                    ; c (h=1)')
    e('    s_lshl_b32 s48, s45, 6                 ; m0')
    e('    v_add_u32 v8, s48, v3')
    e(f'    s_mov_b32 s49, {pitchA}')
    e('    v_mul_lo_u32 v8, v8, s49')
    e(f'    v_add_u32 v9, {8*pitchA}, v8')
    e('    v_lshl_add_u32 v8, v6, 4, v8           ; A voff h=0')
    e('    v_lshl_add_u32 v9, v7, 4, v9           ; A voff h=1')
    e('    v_lshrrev_b32 v10, 1, v4')
    e('    v_and_b32 v11, 2, v3')
    e('    v_xor_b32 v10, v10, v11                ; nb')
    e('    v_lshlrev_b32 v10, 5, v10')
    e('    v_and_b32 v11, 1, v4')
    e('    v_lshl_add_u32 v10, v11, 4, v10')
    e(f'    s_mov_b32 s49, {pitchW}')
    e('    v_mul_lo_u32 v11, v3, s49')
    e('    v_add_u32 v10, v10, v11')
    e('    s_lshl_b32 s48, s46, 7                 ; nblk*128')
    e('    v_add_u32 v10, s48, v10                ; W voff h=0')
    e(f'    v_add_u32 v11, {8*pitchW}, v10         ; W voff h=1')
    if mode == 1:
        e('    s_mov_b32 s24, 0'); e('    s_mov_b32 s25, 0')
    else:
        e(f'    s_mul_i32 s24, s47, {896*2}')
        e(f'    s_mul_i32 s25, s47, {896*pitchW}')
    e('    s_and_b32 s26, s42, 3')
    e('    s_lshl_b32 s26, s26, 11')
    e('    s_cmp_ge_u32 s42, 4')
    e(f'    s_cbranch_scc1 {name}_loader')
    e('    v_lshrrev_b32 v3, 1, v2                ; wm')
    e('    v_and_b32 v4, 31, v1')
    e('    v_lshl_add_u32 v3, v3, 5, v4')
    e('    v_lshrrev_b32 v4, 1, v3')
    e('    v_and_b32 v4, 7, v4')
    e('    v_lshrrev_b32 v5, 5, v1                ; hi')
    e('    v_xor_b32 v4, v4, v5                   ; hi^s')
    e('    v_lshlrev_b32 v5, 7, v3                ; m*128')
    for kk in range(4):
        e(f'    v_xor_b32 v6, {2*kk}, v4')
        e(f'    v_lshl_add_u32 v{12+kk}, v6, 4, v5')
        e(f'    v_add_u32 v{12+kk}, {XBASE}, v{12+kk}')
    e('    v_lshrrev_b32 v3, 4, v1                ; g')
    e('    v_lshrrev_b32 v4, 2, v1')
    e('    v_and_b32 v4, 3, v4                    ; r')
    e('    v_and_b32 v5, 3, v1                    ; c')
    e('    v_and_b32 v6, 1, v2                    ; wn')
    e('    v_and_b32 v7, 1, v3')
    e('    v_lshl_add_u32 v6, v6, 1, v7           ; nb')
    e('    v_and_b32 v7, 2, v4')
    e('    v_xor_b32 v6, v6, v7')
    e('    v_lshrrev_b32 v3, 1, v3')
    e('    v_lshl_add_u32 v3, v3, 3, v4           ; krow')
    e('    v_lshlrev_b32 v3, 7, v3')
    e('    v_lshl_add_u32 v3, v6, 5, v3')
    e('    v_lshl_add_u32 v16, v5, 3, v3')
    ACC = 72
    for i in range(16*NB):
        e(f'    v_mov_b32 v{ACC+i}, 0')
    RB = 32
    def gload(stage):
        rb = RB + (stage % D)*4*LPS
        for h in range(2):
            e(f'    s_add_u32 m0, s26, {XBASE + (stage % SX)*8192 + h*1024}')
            e('    s_nop 0')
            e(f'    buffer_load_dwordx4 v{8+h}, s[8:11], s24 offen lds')
        for b in range(NB):
            for h in range(2):
                e(f'    s_add_u32 m0, s26, {(stage % S)*stage_bytes + 8192*b + h*1024}')
                e('    s_nop 0')
                e(f'    buffer_load_dwordx4 v{10+h}, s[{12+4*b}:{15+4*b}], s25 offen lds')
        e('    s_add_u32 s27, s27, 1')
        e(f'    s_cmp_eq_u32 s27, {KS}')
        e('    s_cselect_b32 s27, 0, s27')
        e('    s_lshl_b32 s24, s27, 7')
        e('    s_add_u32 s24, s24, s56')
        e(f'    s_mul_i32 s25, s27, {64*pitchW}')
        e('    s_add_u32 s25, s25, s57')
    def lwrite(stage):
        rb = RB + (stage % D)*4*LPS
        buf = (stage % S)*stage_bytes
        for i in range(2, LPS):
            o = buf + (i//2-1)*8192 + (i%2)*1024
            if o >= 49152: e(f'    ds_write_b128 v18, v[{rb+4*i}:{rb+4*i+3}] offset:{o-49152}')
            else: e(f'    ds_write_b128 v17, v[{rb+4*i}:{rb+4*i+3}] offset:{o}')
    if DBG:
        e('    s_memtime s[52:53]')
        e('    s_memrealtime s[54:55]')
    FR = 20
    per = 4+4*NB
    def reads(kk):
        b0 = FR+per*kk
        e(f'    ds_read_b128 v[{b0}:{b0+3}], v{12+kk}')
        for b in range(NB):
            for t in range(2):
                e(f'    ds_read_b64_tr_b16 v[{b0+4+4*b+2*t}:{b0+5+4*b+2*t}], v16 offset:{8192*b + kk*2048 + t*512}')
    def mfmas(kk):
        b0 = FR+per*kk
        for b in range(NB):
            e(f'    v_mfma_f32_32x32x16_bf16 v[{ACC+16*b}:{ACC+16*b+15}], v[{b0+4+4*b}:{b0+7+4*b}], v[{b0}:{b0+3}], v[{ACC+16*b}:{ACC+16*b+15}]')
    npr = 1+2*NB
    e('    s_mov_b32 s60, 0')
    e(f'    s_mov_b32 s63, {stage_bytes}')
    e('    s_mov_b32 s64, 0')
    e('    s_mov_b32 s65, 8192')
    e(f'    s_mov_b32 s61, {KS-1}')
    e('    s_barrier')
    reads(0); reads(1)
    e(f'{name}_kloop:')
    reads(2); e(f'    s_waitcnt lgkmcnt({2*npr})'); mfmas(0)
    reads(3); e(f'    s_waitcnt lgkmcnt({2*npr})'); mfmas(1)
    e(f'    s_cmp_eq_u32 s60, {S-1}')
    e(f'    s_cselect_b32 s62, {-(S-1)*stage_bytes}, s63')
    e('    s_add_u32 s60, s60, 1')
    e(f'    s_cmp_eq_u32 s60, {S}')
    e('    s_cselect_b32 s60, 0, s60')
    e('    v_add_u32 v16, s62, v16')
    e(f'    s_cmp_eq_u32 s64, {SX-1}')
    e(f'    s_cselect_b32 s62, {-(SX-1)*8192}, s65')
    e('    s_add_u32 s64, s64, 1')
    e(f'    s_cmp_eq_u32 s64, {SX}')
    e('    s_cselect_b32 s64, 0, s64')
    for r in (12,13,14,15):
        e(f'    v_add_u32 v{r}, s62, v{r}')
    e('    s_barrier')
    reads(0); e(f'    s_waitcnt lgkmcnt({2*npr})'); mfmas(2)
    reads(1); e(f'    s_waitcnt lgkmcnt({2*npr})'); mfmas(3)
    e('    s_sub_u32 s61, s61, 1')
    e('    s_cmp_lg_u32 s61, 0')
    e(f'    s_cbranch_scc1 {name}_kloop')
    reads(2); e(f'    s_waitcnt lgkmcnt({2*npr})'); mfmas(0)
    reads(3); e(f'    s_waitcnt lgkmcnt({2*npr})'); mfmas(1)
    e(f'    s_waitcnt lgkmcnt({npr})'); mfmas(2)
    e('    s_waitcnt lgkmcnt(0)'); mfmas(3)
    e('    s_nop 15')
    e('    s_nop 7')
    e('    v_lshrrev_b32 v3, 1, v2')
    e('    v_and_b32 v4, 31, v1')
    e('    v_lshl_add_u32 v3, v3, 5, v4')
    e('    s_lshl_b32 s48, s45, 6')
    e('    v_add_u32 v3, s48, v3                  ; m')
    e('    v_and_b32 v4, 1, v2')
    e('    v_lshlrev_b32 v4, 5, v4')
    e('    v_lshrrev_b32 v5, 5, v1')
    e('    v_lshl_add_u32 v4, v5, 2, v4')
    e('    s_lshl_b32 s48, s46, 6')
    e('    v_add_u32 v4, s48, v4                  ; n base')
    if mode == 1:
        e('    s_mov_b32 s49, 7168')
        e('    v_mul_lo_u32 v3, v3, s49')
        e('    v_lshl_add_u32 v3, v4, 1, v3')
        e('    s_mov_b32 s49, 0xffff0000')
        e('    s_mov_b32 s50, 0xbfb8aa3b              ; -log2(e)')
        for q in range(4):
            for p in range(2):
                r = 4*q+2*p
                G0, G1, U0, U1 = ACC+r, ACC+r+1, ACC+16+r, ACC+17+r
                e(f'    v_cvt_pk_bf16_f32 v20, v{G0}, v{G1}')
                e(f'    v_cvt_pk_bf16_f32 v21, v{U0}, v{U1}')
                e('    v_lshlrev_b32 v22, 16, v20             ; g0')
                e('    v_and_b32 v23, s49, v20                ; g1')
                e('    v_lshlrev_b32 v24, 16, v21             ; u0')
                e('    v_and_b32 v25, s49, v21                ; u1')
                e('    v_mul_f32 v26, s50, v22')
                e('    v_mul_f32 v27, s50, v23')
                e('    v_exp_f32 v26, v26')
                e('    v_exp_f32 v27, v27')
                e('    s_nop 0')
                e('    v_add_f32 v26, 1.0, v26')
                e('    v_add_f32 v27, 1.0, v27')
                e('    v_rcp_f32 v26, v26')
                e('    v_rcp_f32 v27, v27')
                e('    s_nop 0')
                e('    v_mul_f32 v26, v22, v26')
                e('    v_mul_f32 v27, v23, v27')
                e('    v_cvt_pk_bf16_f32 v28, v26, v27')
                e('    v_lshlrev_b32 v26, 16, v28')
                e('    v_and_b32 v27, s49, v28')
                e('    v_mul_f32 v26, v26, v24')
                e('    v_mul_f32 v27, v27, v25')
                e(f'    v_cvt_pk_bf16_f32 v{30+2*(q&1)+p}, v26, v27')
            e(f'    buffer_store_dwordx2 v[{30+2*(q&1)}:{31+2*(q&1)}], v3, s[20:23], 0 offen offset:{16*q}')
    else:
        e('    v_lshlrev_b32 v3, 12, v3               ; m*4096')
        e('    v_lshl_add_u32 v3, v4, 2, v3')
        e(f'    s_mul_i32 s48, s47, {256*1024*4}')
        e('    v_add_u32 v3, s48, v3')
        for q in range(4):
            e(f'    buffer_store_dwordx4 v[{ACC+4*q}:{ACC+4*q+3}], v3, s[20:23], 0 offen offset:{32*q}')
    e('    s_waitcnt vmcnt(0)')
    if DBG:
        e('    s_memtime s[56:57]')
        e('    s_memrealtime s[58:59]')
        e('    s_waitcnt lgkmcnt(0)')
        e('    s_cmp_lg_u32 s2, 0')
        e(f'    s_cbranch_scc1 {name}_done')
        e('    s_cmp_lg_u32 s42, 0')
        e(f'    s_cbranch_scc1 {name}_done')
        e('    s_mov_b32 s8, s38'); e('    s_and_b32 s9, s39, 0xffff'); e('    s_mov_b32 s10, 256'); e('    s_mov_b32 s11, 0x20000')
        e('    v_mov_b32 v3, 0')
        e('    s_sub_u32 s56, s56, s52')
        e('    s_sub_u32 s58, s58, s54')
        e('    v_mov_b32 v4, s56'); e('    buffer_store_dword v4, v3, s[8:11], 0 offen offset:0')
        e('    v_mov_b32 v4, s58'); e('    buffer_store_dword v4, v3, s[8:11], 0 offen offset:4')
        for k in range(0):
            e(f'    s_sub_u32 s{60+2*k}, s{60+2*k}, s52')
            e(f'    v_mov_b32 v4, s{60+2*k}'); e(f'    buffer_store_dword v4, v3, s[8:11], 0 offen offset:{8+4*k + (0 if mode==1 else 128)}')
        e('    s_waitcnt vmcnt(0)')
    e('    s_endpgm')
    e(f'{name}_loader:')
    e('    v_lshlrev_b32 v17, 4, v1')
    e('    s_mov_b32 s56, s24')
    e('    s_mov_b32 s57, s25')
    e(f'    s_mul_i32 s27, s45, {4 if mode==1 else 3}')
    e('    s_lshr_b32 s48, s2, 5')
    e('    s_add_u32 s27, s27, s48')
    e(f'    s_cmp_ge_u32 s27, {KS}')
    e(f'    s_cselect_b32 s48, {KS}, 0')
    e('    s_sub_u32 s27, s27, s48')
    e('    s_lshl_b32 s24, s27, 7')
    e('    s_add_u32 s24, s24, s56')
    e(f'    s_mul_i32 s25, s27, {64*pitchW}')
    e('    s_add_u32 s25, s25, s57')
    e('    v_add_u32 v17, s26, v17')
    e('    v_add_u32 v18, 49152, v17')
    nissued = 0
    PFX = [0]
    for j in range(KS):
        tgt = min(KS, j+D, 3+2*j)
        while nissued < tgt:
            gload(nissued); nissued += 1
            if mode == 1 and nissued == KS:
                e('    s_mov_b32 s52, s34'); e('    s_and_b32 s53, s35, 0xffff'); e(f'    s_mov_b32 s54, {1024*3584*2}'); e('    s_mov_b32 s55, 0x20000')
                e('    s_lshl_b32 s48, s2, 2')
                e('    s_and_b32 s49, s42, 3')
                e('    s_add_u32 s48, s48, s49')
                e('    s_lshl_b32 s48, s48, 13')
                e('    v_lshlrev_b32 v19, 7, v1')
                e('    buffer_load_dword v19, v19, s[52:55], s48 offen')
                PFX[0] = 1
        e(f'    s_waitcnt vmcnt({(nissued-(j+1))*LPS + PFX[0]})')
        e('    s_barrier')
    e('    s_endpgm')
    e(f'{name}_done:')
    e('    s_endpgm')

def reduce_kernel(name):
    e(f'.globl {name}')
    e('.p2align 8')
    e(f'.type {name},@function')
    e(f'{name}:')
    e('    s_cmp_ge_u32 s2, 256')
    e(f'    s_cbranch_scc1 {name}_done')
    e('    s_load_dwordx2 s[36:37], s[0:1], 32    ; out')
    e('    s_load_dwordx2 s[40:41], s[0:1], 48    ; ws')
    e('    s_lshl_b32 s3, s2, 8')
    e('    v_add_u32 v1, s3, v0')
    e('    v_lshlrev_b32 v2, 4, v1')
    e('    v_lshlrev_b32 v3, 3, v1')
    e('    s_waitcnt lgkmcnt(0)')
    e(f'    s_add_u32 s8, s40, {WS_P_OFF}'); e('    s_addc_u32 s9, s41, 0'); e('    s_and_b32 s9, s9, 0xffff'); e(f'    s_mov_b32 s10, {P_BYTES}'); e('    s_mov_b32 s11, 0x20000')
    e('    s_mov_b32 s12, s36'); e('    s_and_b32 s13, s37, 0xffff'); e(f'    s_mov_b32 s14, {256*1024*2}'); e('    s_mov_b32 s15, 0x20000')
    for s in range(4):
        e(f'    s_mov_b32 s16, {s*256*1024*4}')
        e(f'    buffer_load_dwordx4 v[{4+4*s}:{7+4*s}], v2, s[8:11], s16 offen')
    e('    s_waitcnt vmcnt(2)')
    for i in range(4): e(f'    v_add_f32 v{4+i}, v{4+i}, v{8+i}')
    e('    s_waitcnt vmcnt(1)')
    for i in range(4): e(f'    v_add_f32 v{4+i}, v{4+i}, v{12+i}')
    e('    s_waitcnt vmcnt(0)')
    for i in range(4): e(f'    v_add_f32 v{4+i}, v{4+i}, v{16+i}')
    e('    v_cvt_pk_bf16_f32 v20, v4, v5')
    e('    v_cvt_pk_bf16_f32 v21, v6, v7')
    e('    buffer_store_dwordx2 v[20:21], v3, s[12:15], 0 offen')
    e('    s_waitcnt vmcnt(0)')
    e(f'{name}_done:')
    e('    s_endpgm')

def kd(name, vgpr):
    e(f'.amdhsa_kernel {name}')
    e(f'  .amdhsa_next_free_vgpr {vgpr}')
    e('  .amdhsa_next_free_sgpr 102')
    e(f'  .amdhsa_accum_offset {(vgpr+3)//4*4}')
    e('  .amdhsa_group_segment_fixed_size 0')
    e('  .amdhsa_kernarg_size 56')
    e('  .amdhsa_user_sgpr_count 2')
    e('  .amdhsa_user_sgpr_kernarg_segment_ptr 1')
    e('  .amdhsa_system_sgpr_workgroup_id_x 1')
    e('.end_amdhsa_kernel')

K1 = 'standalone__swiglu_ffn__sampling_kernel'
K2 = 'ffn_down_kernel'
K3 = 'ffn_reduce_kernel'
S1, S2 = 3, 3
e(HEADER.rstrip('\n'))
e(f'; @launch kernel={K1} grid=(224,1,1) block=(512,1,1) lds={6*24576}')
e(f'; @launch kernel={K2} grid=(256,1,1) block=(512,1,1) lds={7*16384}')
e(f'; @launch kernel={K3} grid=(256,1,1) block=(256,1,1) lds=0')
e('.amdgcn_target "amdgcn-amd-amdhsa--gfx950"')
e('.text')
gemm_kernel(K1, 2, 16, S1, 2048, 7168, 1, 3)
gemm_kernel(K2, 1, 14, S2, 7168, 2048, 2, 4)
reduce_kernel(K3)
e('.section .rodata,"a"')
e('.p2align 6')
kd(K1, 128); e(".p2align 6"); kd(K2, 128); e('.p2align 6'); kd(K3, 24)
open(sys.argv[1] if len(sys.argv) > 1 else 'standalone__swiglu_ffn__sampling.s', 'w').write('\n'.join(L)+'\n')
```

```python
import sys
DBG = len(sys.argv) > 2

HEADER = open('standalone__swiglu_ffn__sampling.s.ref').read().split('; Override launch geometry')[0]

L = []
def e(s=''): L.append(s)

WS_H_OFF = 0
WS_P_OFF = 2*1024*1024
H_BYTES = 256*3584*2
P_BYTES = 4*256*1024*4

def gemm_kernel(name, NB, KS, S, pitchA, pitchW, mode, D):
    stage_bytes = 8192*NB
    SX = D+3
    S = SX
    XBASE = S*stage_bytes
    LPS = 2*(1+NB)
    e(f'.globl {name}')
    e('.p2align 8')
    e(f'.type {name},@function')
    e(f'{name}:')
    nwg = 224 if mode == 1 else 256
    e(f'    s_cmp_ge_u32 s2, {nwg}')
    e(f'    s_cbranch_scc1 {name}_done')
    e('    s_load_dwordx4 s[28:31], s[0:1], 0     ; x, w_gate')
    e('    s_load_dwordx4 s[32:35], s[0:1], 16')
    e('    s_load_dwordx4 s[36:39], s[0:1], 32')
    e('    s_load_dwordx2 s[40:41], s[0:1], 48    ; ws')
    e('    v_and_b32 v1, 63, v0                   ; lane')
    e('    v_lshrrev_b32 v2, 6, v0                ; wave')
    e('    s_nop 0')
    e('    v_readfirstlane_b32 s42, v2')
    e('    s_and_b32 s43, s2, 7                   ; xcd-group')
    e('    s_lshr_b32 s44, s2, 3                  ; j')
    e('    s_and_b32 s45, s44, 3                  ; mblk')
    e('    s_lshr_b32 s46, s44, 2                 ; j>>2')
    if mode == 1:
        e('    s_lshl_b32 s46, s46, 3')
        e('    s_add_u32 s46, s46, s43')
    else:
        e('    s_and_b32 s47, s43, 1')
        e('    s_lshl_b32 s47, s47, 3')
        e('    s_add_u32 s46, s46, s47')
        e('    s_lshr_b32 s47, s43, 1                 ; split')
    e('    s_waitcnt lgkmcnt(0)')
    if mode == 1:
        e('    s_mov_b32 s8, s28'); e('    s_and_b32 s9, s29, 0xffff'); e(f'    s_mov_b32 s10, {256*1024*2}'); e('    s_mov_b32 s11, 0x20000')
        e('    s_mov_b32 s12, s30'); e('    s_and_b32 s13, s31, 0xffff'); e(f'    s_mov_b32 s14, {1024*3584*2}'); e('    s_mov_b32 s15, 0x20000')
        e('    s_mov_b32 s16, s32'); e('    s_and_b32 s17, s33, 0xffff'); e(f'    s_mov_b32 s18, {1024*3584*2}'); e('    s_mov_b32 s19, 0x20000')
        e(f'    s_add_u32 s20, s40, {WS_H_OFF}'); e('    s_addc_u32 s21, s41, 0'); e('    s_and_b32 s21, s21, 0xffff'); e(f'    s_mov_b32 s22, {H_BYTES}'); e('    s_mov_b32 s23, 0x20000')
    else:
        e(f'    s_add_u32 s8, s40, {WS_H_OFF}'); e('    s_addc_u32 s9, s41, 0'); e('    s_and_b32 s9, s9, 0xffff'); e(f'    s_mov_b32 s10, {H_BYTES}'); e('    s_mov_b32 s11, 0x20000')
        e('    s_mov_b32 s12, s34'); e('    s_and_b32 s13, s35, 0xffff'); e(f'    s_mov_b32 s14, {1024*3584*2}'); e('    s_mov_b32 s15, 0x20000')
        e(f'    s_add_u32 s20, s40, {WS_P_OFF}'); e('    s_addc_u32 s21, s41, 0'); e('    s_and_b32 s21, s21, 0xffff'); e(f'    s_mov_b32 s22, {P_BYTES}'); e('    s_mov_b32 s23, 0x20000')
    e('    v_and_b32 v2, 3, v2')
    e('    v_lshrrev_b32 v3, 3, v1                ; l>>3')
    e('    v_lshl_add_u32 v3, v2, 4, v3           ; r0 = 16w + (l>>3)')
    e('    v_and_b32 v4, 7, v1                    ; pos')
    e('    v_lshrrev_b32 v5, 4, v1                ; l>>4')
    e('    v_xor_b32 v6, v4, v5                   ; c (h=0)')
    e('    v_xor_b32 v7, 4, v6                    ; c (h=1)')
    e('    s_lshl_b32 s48, s45, 6                 ; m0')
    e('    v_add_u32 v8, s48, v3')
    e(f'    s_mov_b32 s49, {pitchA}')
    e('    v_mul_lo_u32 v8, v8, s49')
    e(f'    v_add_u32 v9, {8*pitchA}, v8')
    e('    v_lshl_add_u32 v8, v6, 4, v8           ; A voff h=0')
    e('    v_lshl_add_u32 v9, v7, 4, v9           ; A voff h=1')
    e('    v_lshrrev_b32 v10, 1, v4')
    e('    v_and_b32 v11, 2, v3')
    e('    v_xor_b32 v10, v10, v11                ; nb')
    e('    v_lshlrev_b32 v10, 5, v10')
    e('    v_and_b32 v11, 1, v4')
    e('    v_lshl_add_u32 v10, v11, 4, v10')
    e(f'    s_mov_b32 s49, {pitchW}')
    e('    v_mul_lo_u32 v11, v3, s49')
    e('    v_add_u32 v10, v10, v11')
    e('    s_lshl_b32 s48, s46, 7                 ; nblk*128')
    e('    v_add_u32 v10, s48, v10                ; W voff h=0')
    e(f'    v_add_u32 v11, {8*pitchW}, v10         ; W voff h=1')
    if mode == 1:
        e('    s_mov_b32 s24, 0'); e('    s_mov_b32 s25, 0')
    else:
        e(f'    s_mul_i32 s24, s47, {896*2}')
        e(f'    s_mul_i32 s25, s47, {896*pitchW}')
    e('    s_and_b32 s26, s42, 3')
    e('    s_lshl_b32 s26, s26, 11')
    e('    s_cmp_ge_u32 s42, 4')
    e(f'    s_cbranch_scc1 {name}_loader')
    e('    v_lshrrev_b32 v3, 1, v2                ; wm')
    e('    v_and_b32 v4, 31, v1')
    e('    v_lshl_add_u32 v3, v3, 5, v4')
    e('    v_lshrrev_b32 v4, 1, v3')
    e('    v_and_b32 v4, 7, v4')
    e('    v_lshrrev_b32 v5, 5, v1                ; hi')
    e('    v_xor_b32 v4, v4, v5                   ; hi^s')
    e('    v_lshlrev_b32 v5, 7, v3                ; m*128')
    for kk in range(4):
        e(f'    v_xor_b32 v6, {2*kk}, v4')
        e(f'    v_lshl_add_u32 v{12+kk}, v6, 4, v5')
        e(f'    v_add_u32 v{12+kk}, {XBASE}, v{12+kk}')
    e('    v_lshrrev_b32 v3, 4, v1                ; g')
    e('    v_lshrrev_b32 v4, 2, v1')
    e('    v_and_b32 v4, 3, v4                    ; r')
    e('    v_and_b32 v5, 3, v1                    ; c')
    e('    v_and_b32 v6, 1, v2                    ; wn')
    e('    v_and_b32 v7, 1, v3')
    e('    v_lshl_add_u32 v6, v6, 1, v7           ; nb')
    e('    v_and_b32 v7, 2, v4')
    e('    v_xor_b32 v6, v6, v7')
    e('    v_lshrrev_b32 v3, 1, v3')
    e('    v_lshl_add_u32 v3, v3, 3, v4           ; krow')
    e('    v_lshlrev_b32 v3, 7, v3')
    e('    v_lshl_add_u32 v3, v6, 5, v3')
    e('    v_lshl_add_u32 v16, v5, 3, v3')
    ACC = 72
    for i in range(16*NB):
        e(f'    v_mov_b32 v{ACC+i}, 0')
    RB = 32
    def gload(stage):
        rb = RB + (stage % D)*4*LPS
        for h in range(2):
            e(f'    s_add_u32 m0, s26, {XBASE + (stage % SX)*8192 + h*1024}')
            e('    s_nop 0')
            e(f'    buffer_load_dwordx4 v{8+h}, s[8:11], s24 offen lds')
        for b in range(NB):
            for h in range(2):
                e(f'    s_add_u32 m0, s26, {(stage % S)*stage_bytes + 8192*b + h*1024}')
                e('    s_nop 0')
                e(f'    buffer_load_dwordx4 v{10+h}, s[{12+4*b}:{15+4*b}], s25 offen lds')
        e('    s_add_u32 s27, s27, 1')
        e(f'    s_cmp_eq_u32 s27, {KS}')
        e('    s_cselect_b32 s27, 0, s27')
        e('    s_lshl_b32 s24, s27, 7')
        e('    s_add_u32 s24, s24, s56')
        e(f'    s_mul_i32 s25, s27, {64*pitchW}')
        e('    s_add_u32 s25, s25, s57')
    def lwrite(stage):
        rb = RB + (stage % D)*4*LPS
        buf = (stage % S)*stage_bytes
        for i in range(2, LPS):
            o = buf + (i//2-1)*8192 + (i%2)*1024
            if o >= 49152: e(f'    ds_write_b128 v18, v[{rb+4*i}:{rb+4*i+3}] offset:{o-49152}')
            else: e(f'    ds_write_b128 v17, v[{rb+4*i}:{rb+4*i+3}] offset:{o}')
    if DBG:
        e('    s_memtime s[52:53]')
        e('    s_memrealtime s[54:55]')
    FR = 20
    per = 4+4*NB
    def reads(kk):
        b0 = FR+per*kk
        e(f'    ds_read_b128 v[{b0}:{b0+3}], v{12+kk}')
        for b in range(NB):
            for t in range(2):
                e(f'    ds_read_b64_tr_b16 v[{b0+4+4*b+2*t}:{b0+5+4*b+2*t}], v16 offset:{8192*b + kk*2048 + t*512}')
    def mfmas(kk):
        b0 = FR+per*kk
        for b in range(NB):
            e(f'    v_mfma_f32_32x32x16_bf16 v[{ACC+16*b}:{ACC+16*b+15}], v[{b0+4+4*b}:{b0+7+4*b}], v[{b0}:{b0+3}], v[{ACC+16*b}:{ACC+16*b+15}]')
    npr = 1+2*NB
    e('    s_mov_b32 s60, 0')
    e(f'    s_mov_b32 s63, {stage_bytes}')
    e('    s_mov_b32 s64, 0')
    e('    s_mov_b32 s65, 8192')
    e(f'    s_mov_b32 s61, {KS-1}')
    e('    s_barrier')
    if DBG: e('    s_memtime s[66:67]')
    reads(0); reads(1)
    e(f'{name}_kloop:')
    reads(2); e(f'    s_waitcnt lgkmcnt({2*npr})'); mfmas(0)
    reads(3); e(f'    s_waitcnt lgkmcnt({2*npr})'); mfmas(1)
    e(f'    s_cmp_eq_u32 s60, {S-1}')
    e(f'    s_cselect_b32 s62, {-(S-1)*stage_bytes}, s63')
    e('    s_add_u32 s60, s60, 1')
    e(f'    s_cmp_eq_u32 s60, {S}')
    e('    s_cselect_b32 s60, 0, s60')
    e('    v_add_u32 v16, s62, v16')
    e(f'    s_cmp_eq_u32 s64, {SX-1}')
    e(f'    s_cselect_b32 s62, {-(SX-1)*8192}, s65')
    e('    s_add_u32 s64, s64, 1')
    e(f'    s_cmp_eq_u32 s64, {SX}')
    e('    s_cselect_b32 s64, 0, s64')
    for r in (12,13,14,15):
        e(f'    v_add_u32 v{r}, s62, v{r}')
    e('    s_barrier')
    reads(0); e(f'    s_waitcnt lgkmcnt({2*npr})'); mfmas(2)
    reads(1); e(f'    s_waitcnt lgkmcnt({2*npr})'); mfmas(3)
    e('    s_sub_u32 s61, s61, 1')
    e('    s_cmp_lg_u32 s61, 0')
    e(f'    s_cbranch_scc1 {name}_kloop')
    reads(2); e(f'    s_waitcnt lgkmcnt({2*npr})'); mfmas(0)
    reads(3); e(f'    s_waitcnt lgkmcnt({2*npr})'); mfmas(1)
    e(f'    s_waitcnt lgkmcnt({npr})'); mfmas(2)
    e('    s_waitcnt lgkmcnt(0)'); mfmas(3)
    if DBG: e('    s_memtime s[68:69]')
    e('    s_nop 15')
    e('    s_nop 7')
    e('    v_lshrrev_b32 v3, 1, v2')
    e('    v_and_b32 v4, 31, v1')
    e('    v_lshl_add_u32 v3, v3, 5, v4')
    e('    s_lshl_b32 s48, s45, 6')
    e('    v_add_u32 v3, s48, v3                  ; m')
    e('    v_and_b32 v4, 1, v2')
    e('    v_lshlrev_b32 v4, 5, v4')
    e('    v_lshrrev_b32 v5, 5, v1')
    e('    v_lshl_add_u32 v4, v5, 2, v4')
    e('    s_lshl_b32 s48, s46, 6')
    e('    v_add_u32 v4, s48, v4                  ; n base')
    if mode == 1:
        e('    s_mov_b32 s49, 7168')
        e('    v_mul_lo_u32 v3, v3, s49')
        e('    v_lshl_add_u32 v3, v4, 1, v3')
        e('    s_mov_b32 s49, 0xffff0000')
        e('    s_mov_b32 s50, 0xbfb8aa3b              ; -log2(e)')
        for q in range(4):
            for p in range(2):
                r = 4*q+2*p
                G0, G1, U0, U1 = ACC+r, ACC+r+1, ACC+16+r, ACC+17+r
                e(f'    v_cvt_pk_bf16_f32 v20, v{G0}, v{G1}')
                e(f'    v_cvt_pk_bf16_f32 v21, v{U0}, v{U1}')
                e('    v_lshlrev_b32 v22, 16, v20             ; g0')
                e('    v_and_b32 v23, s49, v20                ; g1')
                e('    v_lshlrev_b32 v24, 16, v21             ; u0')
                e('    v_and_b32 v25, s49, v21                ; u1')
                e('    v_mul_f32 v26, s50, v22')
                e('    v_mul_f32 v27, s50, v23')
                e('    v_exp_f32 v26, v26')
                e('    v_exp_f32 v27, v27')
                e('    s_nop 0')
                e('    v_add_f32 v26, 1.0, v26')
                e('    v_add_f32 v27, 1.0, v27')
                e('    v_rcp_f32 v26, v26')
                e('    v_rcp_f32 v27, v27')
                e('    s_nop 0')
                e('    v_mul_f32 v26, v22, v26')
                e('    v_mul_f32 v27, v23, v27')
                e('    v_cvt_pk_bf16_f32 v28, v26, v27')
                e('    v_lshlrev_b32 v26, 16, v28')
                e('    v_and_b32 v27, s49, v28')
                e('    v_mul_f32 v26, v26, v24')
                e('    v_mul_f32 v27, v27, v25')
                e(f'    v_cvt_pk_bf16_f32 v{30+2*(q&1)+p}, v26, v27')
            e(f'    buffer_store_dwordx2 v[{30+2*(q&1)}:{31+2*(q&1)}], v3, s[20:23], 0 offen offset:{16*q}')
    else:
        e('    v_lshlrev_b32 v3, 12, v3               ; m*4096')
        e('    v_lshl_add_u32 v3, v4, 2, v3')
        e(f'    s_mul_i32 s48, s47, {256*1024*4}')
        e('    v_add_u32 v3, s48, v3')
        for q in range(4):
            e(f'    buffer_store_dwordx4 v[{ACC+4*q}:{ACC+4*q+3}], v3, s[20:23], 0 offen offset:{32*q}')
    e('    s_waitcnt vmcnt(0)')
    if DBG:
        e('    s_memtime s[56:57]')
        e('    s_memrealtime s[58:59]')
        e('    s_waitcnt lgkmcnt(0)')
        e('    s_cmp_lg_u32 s2, 0')
        e(f'    s_cbranch_scc1 {name}_done')
        e('    s_cmp_lg_u32 s42, 0')
        e(f'    s_cbranch_scc1 {name}_done')
        e('    s_mov_b32 s8, s38'); e('    s_and_b32 s9, s39, 0xffff'); e('    s_mov_b32 s10, 256'); e('    s_mov_b32 s11, 0x20000')
        e('    v_mov_b32 v3, 0')
        e('    s_sub_u32 s56, s56, s52')
        e('    s_sub_u32 s58, s58, s54')
        e('    v_mov_b32 v4, s56'); e(f'    buffer_store_dword v4, v3, s[8:11], 0 offen offset:{0 if mode==1 else 16}')
        e('    s_sub_u32 s66, s66, s52'); e('    s_sub_u32 s68, s68, s52'); e('    v_mov_b32 v4, s66'); e(f'    buffer_store_dword v4, v3, s[8:11], 0 offen offset:{4 if mode==1 else 20}'); e('    v_mov_b32 v4, s68'); e(f'    buffer_store_dword v4, v3, s[8:11], 0 offen offset:{8 if mode==1 else 24}')
        for k in range(0):
            e(f'    s_sub_u32 s{60+2*k}, s{60+2*k}, s52')
            e(f'    v_mov_b32 v4, s{60+2*k}'); e(f'    buffer_store_dword v4, v3, s[8:11], 0 offen offset:{8+4*k + (0 if mode==1 else 128)}')
        e('    s_waitcnt vmcnt(0)')
    e('    s_endpgm')
    e(f'{name}_loader:')
    e('    v_lshlrev_b32 v17, 4, v1')
    e('    s_mov_b32 s56, s24')
    e('    s_mov_b32 s57, s25')
    e(f'    s_mul_i32 s27, s45, {4 if mode==1 else 3}')
    e('    s_lshr_b32 s48, s2, 5')
    e('    s_add_u32 s27, s27, s48')
    e(f'    s_cmp_ge_u32 s27, {KS}')
    e(f'    s_cselect_b32 s48, {KS}, 0')
    e('    s_sub_u32 s27, s27, s48')
    e('    s_lshl_b32 s24, s27, 7')
    e('    s_add_u32 s24, s24, s56')
    e(f'    s_mul_i32 s25, s27, {64*pitchW}')
    e('    s_add_u32 s25, s25, s57')
    e('    v_add_u32 v17, s26, v17')
    e('    v_add_u32 v18, 49152, v17')
    nissued = 0
    PFX = [0]
    for j in range(KS):
        tgt = min(KS, j+D, 3+2*j)
        while nissued < tgt:
            gload(nissued); nissued += 1
            if mode == 1 and nissued == KS:
                e('    s_mov_b32 s52, s34'); e('    s_and_b32 s53, s35, 0xffff'); e(f'    s_mov_b32 s54, {1024*3584*2}'); e('    s_mov_b32 s55, 0x20000')
                e('    s_lshl_b32 s48, s2, 2')
                e('    s_and_b32 s49, s42, 3')
                e('    s_add_u32 s48, s48, s49')
                e('    s_lshl_b32 s48, s48, 13')
                e('    v_lshlrev_b32 v19, 7, v1')
                e('    buffer_load_dword v19, v19, s[52:55], s48 offen')
                PFX[0] = 1
        e(f'    s_waitcnt vmcnt({(nissued-(j+1))*LPS + PFX[0]})')
        e('    s_barrier')
    e('    s_endpgm')
    e(f'{name}_done:')
    e('    s_endpgm')

def reduce_kernel(name):
    e(f'.globl {name}')
    e('.p2align 8')
    e(f'.type {name},@function')
    e(f'{name}:')
    e('    s_cmp_ge_u32 s2, 256')
    e(f'    s_cbranch_scc1 {name}_done')
    e('    s_load_dwordx2 s[36:37], s[0:1], 32    ; out')
    e('    s_load_dwordx2 s[40:41], s[0:1], 48    ; ws')
    e('    s_lshl_b32 s3, s2, 8')
    e('    v_add_u32 v1, s3, v0')
    e('    v_lshlrev_b32 v2, 4, v1')
    e('    v_lshlrev_b32 v3, 3, v1')
    e('    s_waitcnt lgkmcnt(0)')
    e(f'    s_add_u32 s8, s40, {WS_P_OFF}'); e('    s_addc_u32 s9, s41, 0'); e('    s_and_b32 s9, s9, 0xffff'); e(f'    s_mov_b32 s10, {P_BYTES}'); e('    s_mov_b32 s11, 0x20000')
    e('    s_mov_b32 s12, s36'); e('    s_and_b32 s13, s37, 0xffff'); e(f'    s_mov_b32 s14, {256*1024*2}'); e('    s_mov_b32 s15, 0x20000')
    for s in range(4):
        e(f'    s_mov_b32 s16, {s*256*1024*4}')
        e(f'    buffer_load_dwordx4 v[{4+4*s}:{7+4*s}], v2, s[8:11], s16 offen')
    e('    s_waitcnt vmcnt(2)')
    for i in range(4): e(f'    v_add_f32 v{4+i}, v{4+i}, v{8+i}')
    e('    s_waitcnt vmcnt(1)')
    for i in range(4): e(f'    v_add_f32 v{4+i}, v{4+i}, v{12+i}')
    e('    s_waitcnt vmcnt(0)')
    for i in range(4): e(f'    v_add_f32 v{4+i}, v{4+i}, v{16+i}')
    e('    v_cvt_pk_bf16_f32 v20, v4, v5')
    e('    v_cvt_pk_bf16_f32 v21, v6, v7')
    e('    buffer_store_dwordx2 v[20:21], v3, s[12:15], 0 offen')
    e('    s_waitcnt vmcnt(0)')
    e(f'{name}_done:')
    e('    s_endpgm')

def kd(name, vgpr):
    e(f'.amdhsa_kernel {name}')
    e(f'  .amdhsa_next_free_vgpr {vgpr}')
    e('  .amdhsa_next_free_sgpr 102')
    e(f'  .amdhsa_accum_offset {(vgpr+3)//4*4}')
    e('  .amdhsa_group_segment_fixed_size 0')
    e('  .amdhsa_kernarg_size 56')
    e('  .amdhsa_user_sgpr_count 2')
    e('  .amdhsa_user_sgpr_kernarg_segment_ptr 1')
    e('  .amdhsa_system_sgpr_workgroup_id_x 1')
    e('.end_amdhsa_kernel')

K1 = 'standalone__swiglu_ffn__sampling_kernel'
K2 = 'ffn_down_kernel'
K3 = 'ffn_reduce_kernel'
S1, S2 = 3, 3
e(HEADER.rstrip('\n'))
e(f'; @launch kernel={K1} grid=(224,1,1) block=(512,1,1) lds={6*24576}')
e(f'; @launch kernel={K2} grid=(256,1,1) block=(512,1,1) lds={7*16384}')
e(f'; @launch kernel={K3} grid=(256,1,1) block=(256,1,1) lds=0')
e('.amdgcn_target "amdgcn-amd-amdhsa--gfx950"')
e('.text')
gemm_kernel(K1, 2, 16, S1, 2048, 7168, 1, 3)
gemm_kernel(K2, 1, 14, S2, 7168, 2048, 2, 4)
reduce_kernel(K3)
e('.section .rodata,"a"')
e('.p2align 6')
kd(K1, 128); e(".p2align 6"); kd(K2, 128); e('.p2align 6'); kd(K3, 24)
open(sys.argv[1] if len(sys.argv) > 1 else 'standalone__swiglu_ffn__sampling.s', 'w').write('\n'.join(L)+'\n')
```

```python
import sys
DBG = len(sys.argv) > 2

HEADER = open('standalone__swiglu_ffn__sampling.s.ref').read().split('; Override launch geometry')[0]

L = []
def e(s=''): L.append(s)

WS_H_OFF = 0
WS_P_OFF = 2*1024*1024
H_BYTES = 256*3584*2
P_BYTES = 4*256*1024*4

def gemm_kernel(name, NB, KS, S, pitchA, pitchW, mode, D):
    stage_bytes = 8192*NB
    SX = D+3
    S = SX
    XBASE = S*stage_bytes
    LPS = 2*(1+NB)
    e(f'.globl {name}')
    e('.p2align 8')
    e(f'.type {name},@function')
    e(f'{name}:')
    nwg = 224 if mode == 1 else 256
    e(f'    s_cmp_ge_u32 s2, {nwg}')
    e(f'    s_cbranch_scc1 {name}_done')
    e('    s_load_dwordx4 s[28:31], s[0:1], 0     ; x, w_gate')
    e('    s_load_dwordx4 s[32:35], s[0:1], 16')
    e('    s_load_dwordx4 s[36:39], s[0:1], 32')
    e('    s_load_dwordx2 s[40:41], s[0:1], 48    ; ws')
    e('    v_and_b32 v1, 63, v0                   ; lane')
    e('    v_lshrrev_b32 v2, 6, v0                ; wave')
    e('    s_nop 0')
    e('    v_readfirstlane_b32 s42, v2')
    e('    s_and_b32 s43, s2, 7                   ; xcd-group')
    e('    s_lshr_b32 s44, s2, 3                  ; j')
    e('    s_and_b32 s45, s44, 3                  ; mblk')
    e('    s_lshr_b32 s46, s44, 2                 ; j>>2')
    if mode == 1:
        e('    s_lshl_b32 s46, s46, 3')
        e('    s_add_u32 s46, s46, s43')
    else:
        e('    s_and_b32 s47, s43, 1')
        e('    s_lshl_b32 s47, s47, 3')
        e('    s_add_u32 s46, s46, s47')
        e('    s_lshr_b32 s47, s43, 1                 ; split')
    e('    s_waitcnt lgkmcnt(0)')
    if mode == 1:
        e('    s_mov_b32 s8, s28'); e('    s_and_b32 s9, s29, 0xffff'); e(f'    s_mov_b32 s10, {256*1024*2}'); e('    s_mov_b32 s11, 0x20000')
        e('    s_mov_b32 s12, s30'); e('    s_and_b32 s13, s31, 0xffff'); e(f'    s_mov_b32 s14, {1024*3584*2}'); e('    s_mov_b32 s15, 0x20000')
        e('    s_mov_b32 s16, s32'); e('    s_and_b32 s17, s33, 0xffff'); e(f'    s_mov_b32 s18, {1024*3584*2}'); e('    s_mov_b32 s19, 0x20000')
        e(f'    s_add_u32 s20, s40, {WS_H_OFF}'); e('    s_addc_u32 s21, s41, 0'); e('    s_and_b32 s21, s21, 0xffff'); e(f'    s_mov_b32 s22, {H_BYTES}'); e('    s_mov_b32 s23, 0x20000')
    else:
        e(f'    s_add_u32 s8, s40, {WS_H_OFF}'); e('    s_addc_u32 s9, s41, 0'); e('    s_and_b32 s9, s9, 0xffff'); e(f'    s_mov_b32 s10, {H_BYTES}'); e('    s_mov_b32 s11, 0x20000')
        e('    s_mov_b32 s12, s34'); e('    s_and_b32 s13, s35, 0xffff'); e(f'    s_mov_b32 s14, {1024*3584*2}'); e('    s_mov_b32 s15, 0x20000')
        e(f'    s_add_u32 s20, s40, {WS_P_OFF}'); e('    s_addc_u32 s21, s41, 0'); e('    s_and_b32 s21, s21, 0xffff'); e(f'    s_mov_b32 s22, {P_BYTES}'); e('    s_mov_b32 s23, 0x20000')
    e('    v_and_b32 v2, 3, v2')
    e('    v_lshrrev_b32 v3, 3, v1                ; l>>3')
    e('    v_lshl_add_u32 v3, v2, 4, v3           ; r0 = 16w + (l>>3)')
    e('    v_and_b32 v4, 7, v1                    ; pos')
    e('    v_lshrrev_b32 v5, 4, v1                ; l>>4')
    e('    v_xor_b32 v6, v4, v5                   ; c (h=0)')
    e('    v_xor_b32 v7, 4, v6                    ; c (h=1)')
    e('    s_lshl_b32 s48, s45, 6                 ; m0')
    e('    v_add_u32 v8, s48, v3')
    e(f'    s_mov_b32 s49, {pitchA}')
    e('    v_mul_lo_u32 v8, v8, s49')
    e(f'    v_add_u32 v9, {8*pitchA}, v8')
    e('    v_lshl_add_u32 v8, v6, 4, v8           ; A voff h=0')
    e('    v_lshl_add_u32 v9, v7, 4, v9           ; A voff h=1')
    e('    v_lshrrev_b32 v10, 1, v4')
    e('    v_and_b32 v11, 2, v3')
    e('    v_xor_b32 v10, v10, v11                ; nb')
    e('    v_lshlrev_b32 v10, 5, v10')
    e('    v_and_b32 v11, 1, v4')
    e('    v_lshl_add_u32 v10, v11, 4, v10')
    e(f'    s_mov_b32 s49, {pitchW}')
    e('    v_mul_lo_u32 v11, v3, s49')
    e('    v_add_u32 v10, v10, v11')
    e('    s_lshl_b32 s48, s46, 7                 ; nblk*128')
    e('    v_add_u32 v10, s48, v10                ; W voff h=0')
    e(f'    v_add_u32 v11, {8*pitchW}, v10         ; W voff h=1')
    if mode == 1:
        e('    s_mov_b32 s24, 0'); e('    s_mov_b32 s25, 0')
    else:
        e(f'    s_mul_i32 s24, s47, {896*2}')
        e(f'    s_mul_i32 s25, s47, {896*pitchW}')
    e('    s_and_b32 s26, s42, 3')
    e('    s_lshl_b32 s26, s26, 11')
    e('    s_cmp_ge_u32 s42, 4')
    e(f'    s_cbranch_scc1 {name}_loader')
    e('    v_lshrrev_b32 v3, 1, v2                ; wm')
    e('    v_and_b32 v4, 31, v1')
    e('    v_lshl_add_u32 v3, v3, 5, v4')
    e('    v_lshrrev_b32 v4, 1, v3')
    e('    v_and_b32 v4, 7, v4')
    e('    v_lshrrev_b32 v5, 5, v1                ; hi')
    e('    v_xor_b32 v4, v4, v5                   ; hi^s')
    e('    v_lshlrev_b32 v5, 7, v3                ; m*128')
    for kk in range(4):
        e(f'    v_xor_b32 v6, {2*kk}, v4')
        e(f'    v_lshl_add_u32 v{12+kk}, v6, 4, v5')
        e(f'    v_add_u32 v{12+kk}, {XBASE}, v{12+kk}')
    e('    v_lshrrev_b32 v3, 4, v1                ; g')
    e('    v_lshrrev_b32 v4, 2, v1')
    e('    v_and_b32 v4, 3, v4                    ; r')
    e('    v_and_b32 v5, 3, v1                    ; c')
    e('    v_and_b32 v6, 1, v2                    ; wn')
    e('    v_and_b32 v7, 1, v3')
    e('    v_lshl_add_u32 v6, v6, 1, v7           ; nb')
    e('    v_and_b32 v7, 2, v4')
    e('    v_xor_b32 v6, v6, v7')
    e('    v_lshrrev_b32 v3, 1, v3')
    e('    v_lshl_add_u32 v3, v3, 3, v4           ; krow')
    e('    v_lshlrev_b32 v3, 7, v3')
    e('    v_lshl_add_u32 v3, v6, 5, v3')
    e('    v_lshl_add_u32 v16, v5, 3, v3')
    ACC = 72
    for i in range(16*NB):
        e(f'    v_mov_b32 v{ACC+i}, 0')
    RB = 32
    def gload(stage):
        rb = RB + (stage % D)*4*LPS
        for h in range(2):
            e(f'    s_add_u32 m0, s26, {XBASE + (stage % SX)*8192 + h*1024}')
            e('    s_nop 0')
            e(f'    buffer_load_dwordx4 v{8+h}, s[8:11], s24 offen lds')
        for b in range(NB):
            for h in range(2):
                e(f'    s_add_u32 m0, s26, {(stage % S)*stage_bytes + 8192*b + h*1024}')
                e('    s_nop 0')
                e(f'    buffer_load_dwordx4 v{10+h}, s[{12+4*b}:{15+4*b}], s25 offen lds')
        e('    s_add_u32 s27, s27, 1')
        e(f'    s_cmp_eq_u32 s27, {KS}')
        e('    s_cselect_b32 s27, 0, s27')
        e('    s_lshl_b32 s24, s27, 7')
        e('    s_add_u32 s24, s24, s56')
        e(f'    s_mul_i32 s25, s27, {64*pitchW}')
        e('    s_add_u32 s25, s25, s57')
    def lwrite(stage):
        rb = RB + (stage % D)*4*LPS
        buf = (stage % S)*stage_bytes
        for i in range(2, LPS):
            o = buf + (i//2-1)*8192 + (i%2)*1024
            if o >= 49152: e(f'    ds_write_b128 v18, v[{rb+4*i}:{rb+4*i+3}] offset:{o-49152}')
            else: e(f'    ds_write_b128 v17, v[{rb+4*i}:{rb+4*i+3}] offset:{o}')
    if DBG:
        e('    s_memtime s[52:53]')
        e('    s_memrealtime s[54:55]')
    FR = 20
    per = 4+4*NB
    def reads(kk):
        b0 = FR+per*kk
        e(f'    ds_read_b128 v[{b0}:{b0+3}], v{12+kk}')
        for b in range(NB):
            for t in range(2):
                e(f'    ds_read_b64_tr_b16 v[{b0+4+4*b+2*t}:{b0+5+4*b+2*t}], v16 offset:{8192*b + kk*2048 + t*512}')
    def mfmas(kk):
        b0 = FR+per*kk
        for b in range(NB):
            e(f'    v_mfma_f32_32x32x16_bf16 v[{ACC+16*b}:{ACC+16*b+15}], v[{b0+4+4*b}:{b0+7+4*b}], v[{b0}:{b0+3}], v[{ACC+16*b}:{ACC+16*b+15}]')
    npr = 1+2*NB
    e('    s_mov_b32 s60, 0')
    e(f'    s_mov_b32 s63, {stage_bytes}')
    e('    s_mov_b32 s64, 0')
    e('    s_mov_b32 s65, 8192')
    e(f'    s_mov_b32 s61, {KS-1}')
    e('    s_barrier')
    if DBG: e('    s_memtime s[66:67]')
    reads(0); reads(1)
    e(f'{name}_kloop:')
    reads(2); e(f'    s_waitcnt lgkmcnt({2*npr})'); mfmas(0)
    reads(3); e(f'    s_waitcnt lgkmcnt({2*npr})'); mfmas(1)
    e(f'    s_cmp_eq_u32 s60, {S-1}')
    e(f'    s_cselect_b32 s62, {-(S-1)*stage_bytes}, s63')
    e('    s_add_u32 s60, s60, 1')
    e(f'    s_cmp_eq_u32 s60, {S}')
    e('    s_cselect_b32 s60, 0, s60')
    e('    v_add_u32 v16, s62, v16')
    e(f'    s_cmp_eq_u32 s64, {SX-1}')
    e(f'    s_cselect_b32 s62, {-(SX-1)*8192}, s65')
    e('    s_add_u32 s64, s64, 1')
    e(f'    s_cmp_eq_u32 s64, {SX}')
    e('    s_cselect_b32 s64, 0, s64')
    for r in (12,13,14,15):
        e(f'    v_add_u32 v{r}, s62, v{r}')
    e('    s_barrier')
    reads(0); e(f'    s_waitcnt lgkmcnt({2*npr})'); mfmas(2)
    reads(1); e(f'    s_waitcnt lgkmcnt({2*npr})'); mfmas(3)
    e('    s_sub_u32 s61, s61, 1')
    e('    s_cmp_lg_u32 s61, 0')
    e(f'    s_cbranch_scc1 {name}_kloop')
    reads(2); e(f'    s_waitcnt lgkmcnt({2*npr})'); mfmas(0)
    reads(3); e(f'    s_waitcnt lgkmcnt({2*npr})'); mfmas(1)
    e(f'    s_waitcnt lgkmcnt({npr})'); mfmas(2)
    e('    s_waitcnt lgkmcnt(0)'); mfmas(3)
    if DBG: e('    s_memtime s[68:69]')
    e('    s_nop 15')
    e('    s_nop 7')
    e('    v_lshrrev_b32 v3, 1, v2')
    e('    v_and_b32 v4, 31, v1')
    e('    v_lshl_add_u32 v3, v3, 5, v4')
    e('    s_lshl_b32 s48, s45, 6')
    e('    v_add_u32 v3, s48, v3                  ; m')
    e('    v_and_b32 v4, 1, v2')
    e('    v_lshlrev_b32 v4, 5, v4')
    e('    v_lshrrev_b32 v5, 5, v1')
    e('    v_lshl_add_u32 v4, v5, 2, v4')
    e('    s_lshl_b32 s48, s46, 6')
    e('    v_add_u32 v4, s48, v4                  ; n base')
    if mode == 1:
        e('    s_mov_b32 s49, 7168')
        e('    v_mul_lo_u32 v3, v3, s49')
        e('    v_lshl_add_u32 v3, v4, 1, v3')
        e('    s_mov_b32 s49, 0xffff0000')
        e('    s_mov_b32 s50, 0xbfb8aa3b              ; -log2(e)')
        for q in range(4):
            for p in range(2):
                r = 4*q+2*p
                G0, G1, U0, U1 = ACC+r, ACC+r+1, ACC+16+r, ACC+17+r
                e(f'    v_cvt_pk_bf16_f32 v20, v{G0}, v{G1}')
                e(f'    v_cvt_pk_bf16_f32 v21, v{U0}, v{U1}')
                e('    v_lshlrev_b32 v22, 16, v20             ; g0')
                e('    v_and_b32 v23, s49, v20                ; g1')
                e('    v_lshlrev_b32 v24, 16, v21             ; u0')
                e('    v_and_b32 v25, s49, v21                ; u1')
                e('    v_mul_f32 v26, s50, v22')
                e('    v_mul_f32 v27, s50, v23')
                e('    v_exp_f32 v26, v26')
                e('    v_exp_f32 v27, v27')
                e('    s_nop 0')
                e('    v_add_f32 v26, 1.0, v26')
                e('    v_add_f32 v27, 1.0, v27')
                e('    v_rcp_f32 v26, v26')
                e('    v_rcp_f32 v27, v27')
                e('    s_nop 0')
                e('    v_mul_f32 v26, v22, v26')
                e('    v_mul_f32 v27, v23, v27')
                e('    v_cvt_pk_bf16_f32 v28, v26, v27')
                e('    v_lshlrev_b32 v26, 16, v28')
                e('    v_and_b32 v27, s49, v28')
                e('    v_mul_f32 v26, v26, v24')
                e('    v_mul_f32 v27, v27, v25')
                e(f'    v_cvt_pk_bf16_f32 v{30+2*(q&1)+p}, v26, v27')
            e(f'    buffer_store_dwordx2 v[{30+2*(q&1)}:{31+2*(q&1)}], v3, s[20:23], 0 offen offset:{16*q}')
    else:
        e('    v_lshlrev_b32 v3, 12, v3               ; m*4096')
        e('    v_lshl_add_u32 v3, v4, 2, v3')
        e(f'    s_mul_i32 s48, s47, {256*1024*4}')
        e('    v_add_u32 v3, s48, v3')
        for q in range(4):
            e(f'    buffer_store_dwordx4 v[{ACC+4*q}:{ACC+4*q+3}], v3, s[20:23], 0 offen offset:{32*q}')
    e('    s_waitcnt vmcnt(0)')
    if DBG:
        e('    s_memtime s[56:57]')
        e('    s_memrealtime s[58:59]')
        e('    s_waitcnt lgkmcnt(0)')
        e('    s_cmp_lg_u32 s2, 0')
        e(f'    s_cbranch_scc1 {name}_done')
        e('    s_cmp_lg_u32 s42, 0')
        e(f'    s_cbranch_scc1 {name}_done')
        e('    s_mov_b32 s8, s38'); e('    s_and_b32 s9, s39, 0xffff'); e('    s_mov_b32 s10, 256'); e('    s_mov_b32 s11, 0x20000')
        e('    v_mov_b32 v3, 0')
        e('    s_sub_u32 s56, s56, s52')
        e('    s_sub_u32 s58, s58, s54')
        e('    v_mov_b32 v4, s56'); e(f'    buffer_store_dword v4, v3, s[8:11], 0 offen offset:{0 if mode==1 else 16}')
        e('    s_sub_u32 s66, s66, s52'); e('    s_sub_u32 s68, s68, s52'); e('    v_mov_b32 v4, s66'); e(f'    buffer_store_dword v4, v3, s[8:11], 0 offen offset:{4 if mode==1 else 20}'); e('    v_mov_b32 v4, s68'); e(f'    buffer_store_dword v4, v3, s[8:11], 0 offen offset:{8 if mode==1 else 24}')
        for k in range(0):
            e(f'    s_sub_u32 s{60+2*k}, s{60+2*k}, s52')
            e(f'    v_mov_b32 v4, s{60+2*k}'); e(f'    buffer_store_dword v4, v3, s[8:11], 0 offen offset:{8+4*k + (0 if mode==1 else 128)}')
        e('    s_waitcnt vmcnt(0)')
    e('    s_endpgm')
    e(f'{name}_loader:')
    e('    v_lshlrev_b32 v17, 4, v1')
    e('    s_mov_b32 s56, s24')
    e('    s_mov_b32 s57, s25')
    e(f'    s_mul_i32 s27, s45, {4 if mode==1 else 3}')
    e('    s_lshr_b32 s48, s2, 5')
    e('    s_add_u32 s27, s27, s48')
    e(f'    s_cmp_ge_u32 s27, {KS}')
    e(f'    s_cselect_b32 s48, {KS}, 0')
    e('    s_sub_u32 s27, s27, s48')
    e('    s_lshl_b32 s24, s27, 7')
    e('    s_add_u32 s24, s24, s56')
    e(f'    s_mul_i32 s25, s27, {64*pitchW}')
    e('    s_add_u32 s25, s25, s57')
    e('    v_add_u32 v17, s26, v17')
    e('    v_add_u32 v18, 49152, v17')
    nissued = 0
    PFX = [0]
    for j in range(KS):
        tgt = min(KS, j+D, 3+2*j)
        while nissued < tgt:
            gload(nissued); nissued += 1
            if mode == 1 and nissued == KS:
                e('    s_mov_b32 s52, s34'); e('    s_and_b32 s53, s35, 0xffff'); e(f'    s_mov_b32 s54, {1024*3584*2}'); e('    s_mov_b32 s55, 0x20000')
                e('    s_lshl_b32 s48, s2, 2')
                e('    s_and_b32 s49, s42, 3')
                e('    s_add_u32 s48, s48, s49')
                e('    s_lshl_b32 s48, s48, 13')
                e('    v_lshlrev_b32 v19, 7, v1')
                e('    buffer_load_dword v19, v19, s[52:55], s48 offen')
                PFX[0] = 1
        e(f'    s_waitcnt vmcnt({(nissued-(j+1))*LPS + PFX[0]})')
        e('    s_barrier')
    e('    s_endpgm')
    e(f'{name}_done:')
    e('    s_endpgm')

def reduce_kernel(name):
    e(f'.globl {name}')
    e('.p2align 8')
    e(f'.type {name},@function')
    e(f'{name}:')
    e('    s_cmp_ge_u32 s2, 256')
    e(f'    s_cbranch_scc1 {name}_done')
    e('    s_load_dwordx2 s[36:37], s[0:1], 32    ; out')
    e('    s_load_dwordx2 s[40:41], s[0:1], 48    ; ws')
    e('    s_lshl_b32 s3, s2, 8')
    e('    v_add_u32 v1, s3, v0')
    e('    v_lshlrev_b32 v2, 4, v1')
    e('    v_lshlrev_b32 v3, 3, v1')
    e('    s_waitcnt lgkmcnt(0)')
    e(f'    s_add_u32 s8, s40, {WS_P_OFF}'); e('    s_addc_u32 s9, s41, 0'); e('    s_and_b32 s9, s9, 0xffff'); e(f'    s_mov_b32 s10, {P_BYTES}'); e('    s_mov_b32 s11, 0x20000')
    e('    s_mov_b32 s12, s36'); e('    s_and_b32 s13, s37, 0xffff'); e(f'    s_mov_b32 s14, {256*1024*2}'); e('    s_mov_b32 s15, 0x20000')
    for s in range(4):
        e(f'    s_mov_b32 s16, {s*256*1024*4}')
        e(f'    buffer_load_dwordx4 v[{4+4*s}:{7+4*s}], v2, s[8:11], s16 offen')
    e('    s_waitcnt vmcnt(2)')
    for i in range(4): e(f'    v_add_f32 v{4+i}, v{4+i}, v{8+i}')
    e('    s_waitcnt vmcnt(1)')
    for i in range(4): e(f'    v_add_f32 v{4+i}, v{4+i}, v{12+i}')
    e('    s_waitcnt vmcnt(0)')
    for i in range(4): e(f'    v_add_f32 v{4+i}, v{4+i}, v{16+i}')
    e('    v_cvt_pk_bf16_f32 v20, v4, v5')
    e('    v_cvt_pk_bf16_f32 v21, v6, v7')
    e('    buffer_store_dwordx2 v[20:21], v3, s[12:15], 0 offen')
    e('    s_waitcnt vmcnt(0)')
    e(f'{name}_done:')
    e('    s_endpgm')

def kd(name, vgpr):
    e(f'.amdhsa_kernel {name}')
    e(f'  .amdhsa_next_free_vgpr {vgpr}')
    e('  .amdhsa_next_free_sgpr 102')
    e(f'  .amdhsa_accum_offset {(vgpr+3)//4*4}')
    e('  .amdhsa_group_segment_fixed_size 0')
    e('  .amdhsa_kernarg_size 56')
    e('  .amdhsa_user_sgpr_count 2')
    e('  .amdhsa_user_sgpr_kernarg_segment_ptr 1')
    e('  .amdhsa_system_sgpr_workgroup_id_x 1')
    e('.end_amdhsa_kernel')

K1 = 'standalone__swiglu_ffn__sampling_kernel'
K2 = 'ffn_down_kernel'
K3 = 'ffn_reduce_kernel'
S1, S2 = 3, 3
e(HEADER.rstrip('\n'))
e(f'; @launch kernel={K1} grid=(224,1,1) block=(512,1,1) lds={6*24576}')
e(f'; @launch kernel={K2} grid=(256,1,1) block=(512,1,1) lds={6*16384}')
e(f'; @launch kernel={K3} grid=(256,1,1) block=(256,1,1) lds=0')
e('.amdgcn_target "amdgcn-amd-amdhsa--gfx950"')
e('.text')
gemm_kernel(K1, 2, 16, S1, 2048, 7168, 1, 3)
gemm_kernel(K2, 1, 14, S2, 7168, 2048, 2, 3)
reduce_kernel(K3)
e('.section .rodata,"a"')
e('.p2align 6')
kd(K1, 128); e(".p2align 6"); kd(K2, 128); e('.p2align 6'); kd(K3, 24)
open(sys.argv[1] if len(sys.argv) > 1 else 'standalone__swiglu_ffn__sampling.s', 'w').write('\n'.join(L)+'\n')
```

```python
import sys
DBG = len(sys.argv) > 2

HEADER = open('standalone__swiglu_ffn__sampling.s.ref').read().split('; Override launch geometry')[0]

L = []
def e(s=''): L.append(s)

WS_H_OFF = 0
WS_P_OFF = 2*1024*1024
H_BYTES = 256*3584*2
P_BYTES = 4*256*1024*4

def gemm_kernel(name, NB, KS, S, pitchA, pitchW, mode, D):
    stage_bytes = 8192*NB
    SX = D+3
    S = SX
    XBASE = S*stage_bytes
    LPS = 2*(1+NB)
    e(f'.globl {name}')
    e('.p2align 8')
    e(f'.type {name},@function')
    e(f'{name}:')
    nwg = 224 if mode == 1 else 256
    e(f'    s_cmp_ge_u32 s2, {nwg}')
    e(f'    s_cbranch_scc1 {name}_done')
    e('    s_load_dwordx4 s[28:31], s[0:1], 0     ; x, w_gate')
    e('    s_load_dwordx4 s[32:35], s[0:1], 16')
    e('    s_load_dwordx4 s[36:39], s[0:1], 32')
    e('    s_load_dwordx2 s[40:41], s[0:1], 48    ; ws')
    e('    v_and_b32 v1, 63, v0                   ; lane')
    e('    v_lshrrev_b32 v2, 6, v0                ; wave')
    e('    s_nop 0')
    e('    v_readfirstlane_b32 s42, v2')
    e('    s_and_b32 s43, s2, 7                   ; xcd-group')
    e('    s_lshr_b32 s44, s2, 3                  ; j')
    e('    s_and_b32 s45, s44, 3                  ; mblk')
    e('    s_lshr_b32 s46, s44, 2                 ; j>>2')
    if mode == 1:
        e('    s_lshl_b32 s46, s46, 3')
        e('    s_add_u32 s46, s46, s43')
    else:
        e('    s_and_b32 s47, s43, 1')
        e('    s_lshl_b32 s47, s47, 3')
        e('    s_add_u32 s46, s46, s47')
        e('    s_lshr_b32 s47, s43, 1                 ; split')
    e('    s_waitcnt lgkmcnt(0)')
    if mode == 1:
        e('    s_mov_b32 s8, s28'); e('    s_and_b32 s9, s29, 0xffff'); e(f'    s_mov_b32 s10, {256*1024*2}'); e('    s_mov_b32 s11, 0x20000')
        e('    s_mov_b32 s12, s30'); e('    s_and_b32 s13, s31, 0xffff'); e(f'    s_mov_b32 s14, {1024*3584*2}'); e('    s_mov_b32 s15, 0x20000')
        e('    s_mov_b32 s16, s32'); e('    s_and_b32 s17, s33, 0xffff'); e(f'    s_mov_b32 s18, {1024*3584*2}'); e('    s_mov_b32 s19, 0x20000')
        e(f'    s_add_u32 s20, s40, {WS_H_OFF}'); e('    s_addc_u32 s21, s41, 0'); e('    s_and_b32 s21, s21, 0xffff'); e(f'    s_mov_b32 s22, {H_BYTES}'); e('    s_mov_b32 s23, 0x20000')
    else:
        e(f'    s_add_u32 s8, s40, {WS_H_OFF}'); e('    s_addc_u32 s9, s41, 0'); e('    s_and_b32 s9, s9, 0xffff'); e(f'    s_mov_b32 s10, {H_BYTES}'); e('    s_mov_b32 s11, 0x20000')
        e('    s_mov_b32 s12, s34'); e('    s_and_b32 s13, s35, 0xffff'); e(f'    s_mov_b32 s14, {1024*3584*2}'); e('    s_mov_b32 s15, 0x20000')
        e(f'    s_add_u32 s20, s40, {WS_P_OFF}'); e('    s_addc_u32 s21, s41, 0'); e('    s_and_b32 s21, s21, 0xffff'); e(f'    s_mov_b32 s22, {P_BYTES}'); e('    s_mov_b32 s23, 0x20000')
    e('    v_and_b32 v2, 3, v2')
    e('    v_lshrrev_b32 v3, 3, v1                ; l>>3')
    e('    v_lshl_add_u32 v3, v2, 4, v3           ; r0 = 16w + (l>>3)')
    e('    v_and_b32 v4, 7, v1                    ; pos')
    e('    v_lshrrev_b32 v5, 4, v1                ; l>>4')
    e('    v_xor_b32 v6, v4, v5                   ; c (h=0)')
    e('    v_xor_b32 v7, 4, v6                    ; c (h=1)')
    e('    s_lshl_b32 s48, s45, 6                 ; m0')
    e('    v_add_u32 v8, s48, v3')
    e(f'    s_mov_b32 s49, {pitchA}')
    e('    v_mul_lo_u32 v8, v8, s49')
    e(f'    v_add_u32 v9, {8*pitchA}, v8')
    e('    v_lshl_add_u32 v8, v6, 4, v8           ; A voff h=0')
    e('    v_lshl_add_u32 v9, v7, 4, v9           ; A voff h=1')
    e('    v_lshrrev_b32 v10, 1, v4')
    e('    v_and_b32 v11, 2, v3')
    e('    v_xor_b32 v10, v10, v11                ; nb')
    e('    v_lshlrev_b32 v10, 5, v10')
    e('    v_and_b32 v11, 1, v4')
    e('    v_lshl_add_u32 v10, v11, 4, v10')
    e(f'    s_mov_b32 s49, {pitchW}')
    e('    v_mul_lo_u32 v11, v3, s49')
    e('    v_add_u32 v10, v10, v11')
    e('    s_lshl_b32 s48, s46, 7                 ; nblk*128')
    e('    v_add_u32 v10, s48, v10                ; W voff h=0')
    e(f'    v_add_u32 v11, {8*pitchW}, v10         ; W voff h=1')
    if mode == 1:
        e('    s_mov_b32 s24, 0'); e('    s_mov_b32 s25, 0')
    else:
        e(f'    s_mul_i32 s24, s47, {896*2}')
        e(f'    s_mul_i32 s25, s47, {896*pitchW}')
    e('    s_and_b32 s26, s42, 3')
    e('    s_lshl_b32 s26, s26, 11')
    e('    s_cmp_ge_u32 s42, 4')
    e(f'    s_cbranch_scc1 {name}_loader')
    e('    v_lshrrev_b32 v3, 1, v2                ; wm')
    e('    v_and_b32 v4, 31, v1')
    e('    v_lshl_add_u32 v3, v3, 5, v4')
    e('    v_lshrrev_b32 v4, 1, v3')
    e('    v_and_b32 v4, 7, v4')
    e('    v_lshrrev_b32 v5, 5, v1                ; hi')
    e('    v_xor_b32 v4, v4, v5                   ; hi^s')
    e('    v_lshlrev_b32 v5, 7, v3                ; m*128')
    for kk in range(4):
        e(f'    v_xor_b32 v6, {2*kk}, v4')
        e(f'    v_lshl_add_u32 v{12+kk}, v6, 4, v5')
        e(f'    v_add_u32 v{12+kk}, {XBASE}, v{12+kk}')
    e('    v_lshrrev_b32 v3, 4, v1                ; g')
    e('    v_lshrrev_b32 v4, 2, v1')
    e('    v_and_b32 v4, 3, v4                    ; r')
    e('    v_and_b32 v5, 3, v1                    ; c')
    e('    v_and_b32 v6, 1, v2                    ; wn')
    e('    v_and_b32 v7, 1, v3')
    e('    v_lshl_add_u32 v6, v6, 1, v7           ; nb')
    e('    v_and_b32 v7, 2, v4')
    e('    v_xor_b32 v6, v6, v7')
    e('    v_lshrrev_b32 v3, 1, v3')
    e('    v_lshl_add_u32 v3, v3, 3, v4           ; krow')
    e('    v_lshlrev_b32 v3, 7, v3')
    e('    v_lshl_add_u32 v3, v6, 5, v3')
    e('    v_lshl_add_u32 v16, v5, 3, v3')
    ACC = 72
    for i in range(16*NB):
        e(f'    v_mov_b32 v{ACC+i}, 0')
    RB = 32
    def gload(stage):
        rb = RB + (stage % D)*4*LPS
        for h in range(2):
            e(f'    s_add_u32 m0, s26, {XBASE + (stage % SX)*8192 + h*1024}')
            e('    s_nop 0')
            e(f'    buffer_load_dwordx4 v{8+h}, s[8:11], s24 offen lds')
        for b in range(NB):
            for h in range(2):
                e(f'    s_add_u32 m0, s26, {(stage % S)*stage_bytes + 8192*b + h*1024}')
                e('    s_nop 0')
                e(f'    buffer_load_dwordx4 v{10+h}, s[{12+4*b}:{15+4*b}], s25 offen lds')
        e('    s_add_u32 s27, s27, 1')
        e(f'    s_cmp_eq_u32 s27, {KS}')
        e('    s_cselect_b32 s27, 0, s27')
        e('    s_lshl_b32 s24, s27, 7')
        e('    s_add_u32 s24, s24, s56')
        e(f'    s_mul_i32 s25, s27, {64*pitchW}')
        e('    s_add_u32 s25, s25, s57')
    def lwrite(stage):
        rb = RB + (stage % D)*4*LPS
        buf = (stage % S)*stage_bytes
        for i in range(2, LPS):
            o = buf + (i//2-1)*8192 + (i%2)*1024
            if o >= 49152: e(f'    ds_write_b128 v18, v[{rb+4*i}:{rb+4*i+3}] offset:{o-49152}')
            else: e(f'    ds_write_b128 v17, v[{rb+4*i}:{rb+4*i+3}] offset:{o}')
    if DBG:
        e('    s_memtime s[52:53]')
        e('    s_memrealtime s[54:55]')
    FR = 20
    per = 4+4*NB
    def reads(kk):
        b0 = FR+per*kk
        e(f'    ds_read_b128 v[{b0}:{b0+3}], v{12+kk}')
        for b in range(NB):
            for t in range(2):
                e(f'    ds_read_b64_tr_b16 v[{b0+4+4*b+2*t}:{b0+5+4*b+2*t}], v16 offset:{8192*b + kk*2048 + t*512}')
    def mfmas(kk):
        b0 = FR+per*kk
        for b in range(NB):
            e(f'    v_mfma_f32_32x32x16_bf16 v[{ACC+16*b}:{ACC+16*b+15}], v[{b0+4+4*b}:{b0+7+4*b}], v[{b0}:{b0+3}], v[{ACC+16*b}:{ACC+16*b+15}]')
    npr = 1+2*NB
    e('    s_mov_b32 s60, 0')
    e(f'    s_mov_b32 s63, {stage_bytes}')
    e('    s_mov_b32 s64, 0')
    e('    s_mov_b32 s65, 8192')
    e(f'    s_mov_b32 s61, {KS-1}')
    e('    s_barrier')
    if DBG: e('    s_memtime s[66:67]')
    reads(0); reads(1)
    e(f'{name}_kloop:')
    reads(2); e(f'    s_waitcnt lgkmcnt({2*npr})'); mfmas(0)
    reads(3); e(f'    s_waitcnt lgkmcnt({2*npr})'); mfmas(1)
    e(f'    s_cmp_eq_u32 s60, {S-1}')
    e(f'    s_cselect_b32 s62, {-(S-1)*stage_bytes}, s63')
    e('    s_add_u32 s60, s60, 1')
    e(f'    s_cmp_eq_u32 s60, {S}')
    e('    s_cselect_b32 s60, 0, s60')
    e('    v_add_u32 v16, s62, v16')
    e(f'    s_cmp_eq_u32 s64, {SX-1}')
    e(f'    s_cselect_b32 s62, {-(SX-1)*8192}, s65')
    e('    s_add_u32 s64, s64, 1')
    e(f'    s_cmp_eq_u32 s64, {SX}')
    e('    s_cselect_b32 s64, 0, s64')
    for r in (12,13,14,15):
        e(f'    v_add_u32 v{r}, s62, v{r}')
    e('    s_barrier')
    reads(0); e(f'    s_waitcnt lgkmcnt({2*npr})'); mfmas(2)
    reads(1); e(f'    s_waitcnt lgkmcnt({2*npr})'); mfmas(3)
    e('    s_sub_u32 s61, s61, 1')
    e('    s_cmp_lg_u32 s61, 0')
    e(f'    s_cbranch_scc1 {name}_kloop')
    reads(2); e(f'    s_waitcnt lgkmcnt({2*npr})'); mfmas(0)
    reads(3); e(f'    s_waitcnt lgkmcnt({2*npr})'); mfmas(1)
    e(f'    s_waitcnt lgkmcnt({npr})'); mfmas(2)
    e('    s_waitcnt lgkmcnt(0)'); mfmas(3)
    if DBG: e('    s_memtime s[68:69]')
    e('    s_nop 15')
    e('    s_nop 7')
    e('    v_lshrrev_b32 v3, 1, v2')
    e('    v_and_b32 v4, 31, v1')
    e('    v_lshl_add_u32 v3, v3, 5, v4')
    e('    s_lshl_b32 s48, s45, 6')
    e('    v_add_u32 v3, s48, v3                  ; m')
    e('    v_and_b32 v4, 1, v2')
    e('    v_lshlrev_b32 v4, 5, v4')
    e('    v_lshrrev_b32 v5, 5, v1')
    e('    v_lshl_add_u32 v4, v5, 2, v4')
    e('    s_lshl_b32 s48, s46, 6')
    e('    v_add_u32 v4, s48, v4                  ; n base')
    if mode == 1:
        e('    s_mov_b32 s49, 7168')
        e('    v_mul_lo_u32 v3, v3, s49')
        e('    v_lshl_add_u32 v3, v4, 1, v3')
        e('    s_mov_b32 s49, 0xffff0000')
        e('    s_mov_b32 s50, 0xbfb8aa3b              ; -log2(e)')
        for q in range(4):
            for p in range(2):
                r = 4*q+2*p
                G0, G1, U0, U1 = ACC+r, ACC+r+1, ACC+16+r, ACC+17+r
                e(f'    v_cvt_pk_bf16_f32 v20, v{G0}, v{G1}')
                e(f'    v_cvt_pk_bf16_f32 v21, v{U0}, v{U1}')
                e('    v_lshlrev_b32 v22, 16, v20             ; g0')
                e('    v_and_b32 v23, s49, v20                ; g1')
                e('    v_lshlrev_b32 v24, 16, v21             ; u0')
                e('    v_and_b32 v25, s49, v21                ; u1')
                e('    v_mul_f32 v26, s50, v22')
                e('    v_mul_f32 v27, s50, v23')
                e('    v_exp_f32 v26, v26')
                e('    v_exp_f32 v27, v27')
                e('    s_nop 0')
                e('    v_add_f32 v26, 1.0, v26')
                e('    v_add_f32 v27, 1.0, v27')
                e('    v_rcp_f32 v26, v26')
                e('    v_rcp_f32 v27, v27')
                e('    s_nop 0')
                e('    v_mul_f32 v26, v22, v26')
                e('    v_mul_f32 v27, v23, v27')
                e('    v_cvt_pk_bf16_f32 v28, v26, v27')
                e('    v_lshlrev_b32 v26, 16, v28')
                e('    v_and_b32 v27, s49, v28')
                e('    v_mul_f32 v26, v26, v24')
                e('    v_mul_f32 v27, v27, v25')
                e(f'    v_cvt_pk_bf16_f32 v{30+2*(q&1)+p}, v26, v27')
            e(f'    buffer_store_dwordx2 v[{30+2*(q&1)}:{31+2*(q&1)}], v3, s[20:23], 0 offen offset:{16*q}')
    else:
        e('    v_lshlrev_b32 v3, 12, v3               ; m*4096')
        e('    v_lshl_add_u32 v3, v4, 2, v3')
        e(f'    s_mul_i32 s48, s47, {256*1024*4}')
        e('    v_add_u32 v3, s48, v3')
        for q in range(4):
            e(f'    buffer_store_dwordx4 v[{ACC+4*q}:{ACC+4*q+3}], v3, s[20:23], 0 offen offset:{32*q}')
    e('    s_waitcnt vmcnt(0)')
    if DBG:
        e('    s_memtime s[56:57]')
        e('    s_memrealtime s[58:59]')
        e('    s_waitcnt lgkmcnt(0)')
        e('    s_cmp_lg_u32 s2, 0')
        e(f'    s_cbranch_scc1 {name}_done')
        e('    s_cmp_lg_u32 s42, 0')
        e(f'    s_cbranch_scc1 {name}_done')
        e('    s_mov_b32 s8, s38'); e('    s_and_b32 s9, s39, 0xffff'); e('    s_mov_b32 s10, 256'); e('    s_mov_b32 s11, 0x20000')
        e('    v_mov_b32 v3, 0')
        e('    s_sub_u32 s56, s56, s52')
        e('    s_sub_u32 s58, s58, s54')
        e('    v_mov_b32 v4, s56'); e(f'    buffer_store_dword v4, v3, s[8:11], 0 offen offset:{0 if mode==1 else 16}')
        e('    s_sub_u32 s66, s66, s52'); e('    s_sub_u32 s68, s68, s52'); e('    v_mov_b32 v4, s66'); e(f'    buffer_store_dword v4, v3, s[8:11], 0 offen offset:{4 if mode==1 else 20}'); e('    v_mov_b32 v4, s68'); e(f'    buffer_store_dword v4, v3, s[8:11], 0 offen offset:{8 if mode==1 else 24}')
        for k in range(0):
            e(f'    s_sub_u32 s{60+2*k}, s{60+2*k}, s52')
            e(f'    v_mov_b32 v4, s{60+2*k}'); e(f'    buffer_store_dword v4, v3, s[8:11], 0 offen offset:{8+4*k + (0 if mode==1 else 128)}')
        e('    s_waitcnt vmcnt(0)')
    e('    s_endpgm')
    e(f'{name}_loader:')
    e('    v_lshlrev_b32 v17, 4, v1')
    e('    s_mov_b32 s56, s24')
    e('    s_mov_b32 s57, s25')
    e(f'    s_mul_i32 s27, s45, {4 if mode==1 else 3}')
    e('    s_lshr_b32 s48, s2, 5')
    e('    s_add_u32 s27, s27, s48')
    e(f'    s_cmp_ge_u32 s27, {KS}')
    e(f'    s_cselect_b32 s48, {KS}, 0')
    e('    s_sub_u32 s27, s27, s48')
    e('    s_lshl_b32 s24, s27, 7')
    e('    s_add_u32 s24, s24, s56')
    e(f'    s_mul_i32 s25, s27, {64*pitchW}')
    e('    s_add_u32 s25, s25, s57')
    e('    v_add_u32 v17, s26, v17')
    e('    v_add_u32 v18, 49152, v17')
    def dissue():
        e('    s_add_u32 s72, s26, s70')
        for h in range(2):
            e(f'    s_add_u32 m0, s72, {XBASE + h*1024}')
            e('    s_nop 0')
            e(f'    buffer_load_dwordx4 v{8+h}, s[8:11], s24 offen lds')
        e('    s_add_u32 s72, s26, s71')
        for b in range(NB):
            for h in range(2):
                e(f'    s_add_u32 m0, s72, {8192*b + h*1024}')
                e('    s_nop 0')
                e(f'    buffer_load_dwordx4 v{10+h}, s[{12+4*b}:{15+4*b}], s25 offen lds')
        e('    s_add_u32 s70, s70, 8192')
        e(f'    s_cmp_eq_u32 s70, {SX*8192}')
        e('    s_cselect_b32 s70, 0, s70')
        e(f'    s_add_u32 s71, s71, {stage_bytes}')
        e(f'    s_cmp_eq_u32 s71, {SX*stage_bytes}')
        e('    s_cselect_b32 s71, 0, s71')
        e('    s_add_u32 s27, s27, 1')
        e(f'    s_cmp_eq_u32 s27, {KS}')
        e('    s_cselect_b32 s27, 0, s27')
        e('    s_lshl_b32 s24, s27, 7')
        e('    s_add_u32 s24, s24, s56')
        e(f'    s_mul_i32 s25, s27, {64*pitchW}')
        e('    s_add_u32 s25, s25, s57')
    e('    s_mov_b32 s70, 0')
    e('    s_mov_b32 s71, 0')
    e(f'    s_mov_b32 s73, {D}')
    e(f'{name}_lpro:')
    dissue()
    e('    s_sub_u32 s73, s73, 1')
    e('    s_cmp_lg_u32 s73, 0')
    e(f'    s_cbranch_scc1 {name}_lpro')
    e(f'    s_mov_b32 s73, {KS-D}')
    e(f'{name}_lloop:')
    e(f'    s_waitcnt vmcnt({(D-1)*LPS})')
    e('    s_barrier')
    dissue()
    e('    s_sub_u32 s73, s73, 1')
    e('    s_cmp_lg_u32 s73, 0')
    e(f'    s_cbranch_scc1 {name}_lloop')
    pf = 0
    if mode == 1:
        e('    s_mov_b32 s52, s34'); e('    s_and_b32 s53, s35, 0xffff'); e(f'    s_mov_b32 s54, {1024*3584*2}'); e('    s_mov_b32 s55, 0x20000')
        e('    s_lshl_b32 s48, s2, 2')
        e('    s_and_b32 s49, s42, 3')
        e('    s_add_u32 s48, s48, s49')
        e('    s_lshl_b32 s48, s48, 13')
        e('    v_lshlrev_b32 v19, 7, v1')
        e('    buffer_load_dword v19, v19, s[52:55], s48 offen')
        pf = 1
    for j in range(KS-D, KS):
        e(f'    s_waitcnt vmcnt({(KS-1-j)*LPS + pf})')
        e('    s_barrier')
    e('    s_endpgm')
    e(f'{name}_done:')
    e('    s_endpgm')

def reduce_kernel(name):
    e(f'.globl {name}')
    e('.p2align 8')
    e(f'.type {name},@function')
    e(f'{name}:')
    e('    s_cmp_ge_u32 s2, 256')
    e(f'    s_cbranch_scc1 {name}_done')
    e('    s_load_dwordx2 s[36:37], s[0:1], 32    ; out')
    e('    s_load_dwordx2 s[40:41], s[0:1], 48    ; ws')
    e('    s_lshl_b32 s3, s2, 8')
    e('    v_add_u32 v1, s3, v0')
    e('    v_lshlrev_b32 v2, 4, v1')
    e('    v_lshlrev_b32 v3, 3, v1')
    e('    s_waitcnt lgkmcnt(0)')
    e(f'    s_add_u32 s8, s40, {WS_P_OFF}'); e('    s_addc_u32 s9, s41, 0'); e('    s_and_b32 s9, s9, 0xffff'); e(f'    s_mov_b32 s10, {P_BYTES}'); e('    s_mov_b32 s11, 0x20000')
    e('    s_mov_b32 s12, s36'); e('    s_and_b32 s13, s37, 0xffff'); e(f'    s_mov_b32 s14, {256*1024*2}'); e('    s_mov_b32 s15, 0x20000')
    for s in range(4):
        e(f'    s_mov_b32 s16, {s*256*1024*4}')
        e(f'    buffer_load_dwordx4 v[{4+4*s}:{7+4*s}], v2, s[8:11], s16 offen')
    e('    s_waitcnt vmcnt(2)')
    for i in range(4): e(f'    v_add_f32 v{4+i}, v{4+i}, v{8+i}')
    e('    s_waitcnt vmcnt(1)')
    for i in range(4): e(f'    v_add_f32 v{4+i}, v{4+i}, v{12+i}')
    e('    s_waitcnt vmcnt(0)')
    for i in range(4): e(f'    v_add_f32 v{4+i}, v{4+i}, v{16+i}')
    e('    v_cvt_pk_bf16_f32 v20, v4, v5')
    e('    v_cvt_pk_bf16_f32 v21, v6, v7')
    e('    buffer_store_dwordx2 v[20:21], v3, s[12:15], 0 offen')
    e('    s_waitcnt vmcnt(0)')
    e(f'{name}_done:')
    e('    s_endpgm')

def kd(name, vgpr):
    e(f'.amdhsa_kernel {name}')
    e(f'  .amdhsa_next_free_vgpr {vgpr}')
    e('  .amdhsa_next_free_sgpr 102')
    e(f'  .amdhsa_accum_offset {(vgpr+3)//4*4}')
    e('  .amdhsa_group_segment_fixed_size 0')
    e('  .amdhsa_kernarg_size 56')
    e('  .amdhsa_user_sgpr_count 2')
    e('  .amdhsa_user_sgpr_kernarg_segment_ptr 1')
    e('  .amdhsa_system_sgpr_workgroup_id_x 1')
    e('.end_amdhsa_kernel')

K1 = 'standalone__swiglu_ffn__sampling_kernel'
K2 = 'ffn_down_kernel'
K3 = 'ffn_reduce_kernel'
S1, S2 = 3, 3
e(HEADER.rstrip('\n'))
e(f'; @launch kernel={K1} grid=(224,1,1) block=(512,1,1) lds={6*24576}')
e(f'; @launch kernel={K2} grid=(256,1,1) block=(512,1,1) lds={6*16384}')
e(f'; @launch kernel={K3} grid=(256,1,1) block=(256,1,1) lds=0')
e('.amdgcn_target "amdgcn-amd-amdhsa--gfx950"')
e('.text')
gemm_kernel(K1, 2, 16, S1, 2048, 7168, 1, 3)
gemm_kernel(K2, 1, 14, S2, 7168, 2048, 2, 3)
reduce_kernel(K3)
e('.section .rodata,"a"')
e('.p2align 6')
kd(K1, 128); e(".p2align 6"); kd(K2, 128); e('.p2align 6'); kd(K3, 24)
open(sys.argv[1] if len(sys.argv) > 1 else 'standalone__swiglu_ffn__sampling.s', 'w').write('\n'.join(L)+'\n')
```
